```python
import torch

def _softmax(x, axis=-1):
    return torch.softmax(x, dim=axis)
def _gelu(x):
    return torch.nn.functional.gelu(x, approximate="tanh")
def _silu(x):
    return torch.nn.functional.silu(x)
def _sigmoid(x):
    return torch.sigmoid(x)
def _layernorm(x, axis=-1, eps=1e-5):
    m = x.mean(dim=axis, keepdim=True)
    v = x.var(dim=axis, keepdim=True, unbiased=False)
    return (x - m) / torch.sqrt(v + eps)
def _scatter_add(tgt, idx, src, axis=0):
    return tgt.clone().index_add_(axis, idx, src)
def _segment_sum(src, seg, n):
    out = torch.zeros((n,) + src.shape[1:], dtype=src.dtype)
    return out.index_add_(0, seg, src)
def _pad(x, pw):
    flat = tuple(v for pair in reversed(pw) for v in pair)
    return torch.nn.functional.pad(x, flat)

kernel_name = 'gated_mix__ssm_conv_s5__glu_gated_bilinear__prompt'

def setup_inputs():

    _w = (lambda a: (lambda t: t.to(torch.bfloat16) if t.is_floating_point() else t)(torch.as_tensor(a)))
    def _A_setup():
        B, S, D = 1, 2048, 448
        P = D
        Lambda_re = -0.5 * (lambda _x: torch.exp(torch.as_tensor(_x)))((lambda *s: torch.randn(*s, dtype=torch.bfloat16) * 0.2)(P))
        Lambda_im = (lambda *s: torch.randn(*s, dtype=torch.bfloat16) * 0.4)(P) * 1.0
        B_re = (lambda *s: torch.randn(*s, dtype=torch.bfloat16) * 0.2)(P, D) * (D ** -0.5)
        B_im = (lambda *s: torch.randn(*s, dtype=torch.bfloat16) * 0.2)(P, D) * (D ** -0.5)
        C_re = (lambda *s: torch.randn(*s, dtype=torch.bfloat16) * 0.2)(D, P) * (P ** -0.5)
        C_im = (lambda *s: torch.randn(*s, dtype=torch.bfloat16) * 0.2)(D, P) * (P ** -0.5)
        log_dt = (lambda *s: torch.randn(*s, dtype=torch.bfloat16) * 0.2)(P) * 0.3 - 2.0
        Dskip = (lambda *s: torch.randn(*s, dtype=torch.bfloat16) * 0.05)(D)
        return {
            "x": _w((lambda *s: torch.randn(*s, dtype=torch.bfloat16) * 0.05)(B, S, D)),
            "Lambda_re": _w(Lambda_re),
            "Lambda_im": _w(Lambda_im),
            "B_re": _w(B_re),
            "B_im": _w(B_im),
            "C_re": _w(C_re),
            "C_im": _w(C_im),
            "log_dt": _w(log_dt),
            "Dskip": _w(Dskip),
        }
    _A_in = _A_setup()

    def _B_setup():
        B, S, D, F = 1, 2048, 448, 1792
        return {
            "x": _w((lambda *s: torch.randn(*s, dtype=torch.bfloat16) * 0.05)(B, S, D)),
            "w_gate": _w((lambda *s: torch.randn(*s, dtype=torch.bfloat16) * 0.8)(D, F) * (D ** -0.5)),
            "w_up": _w((lambda *s: torch.randn(*s, dtype=torch.bfloat16) * 0.8)(D, F) * (D ** -0.5)),
            "w_down": _w((lambda *s: torch.randn(*s, dtype=torch.bfloat16) * 0.8)(F, D) * (F ** -0.5)),
        }
    _B_in = _B_setup()

    return {
        "A_x": _A_in["x"],
        "A_Lambda_re": _A_in["Lambda_re"],
        "A_Lambda_im": _A_in["Lambda_im"],
        "A_B_re": _A_in["B_re"],
        "A_B_im": _A_in["B_im"],
        "A_C_re": _A_in["C_re"],
        "A_C_im": _A_in["C_im"],
        "A_log_dt": _A_in["log_dt"],
        "A_Dskip": _A_in["Dskip"],
        "B_x": _B_in["x"],
        "B_w_gate": _B_in["w_gate"],
        "B_w_up": _B_in["w_up"],
        "B_w_down": _B_in["w_down"],
        "gate_w": _w((lambda *s: torch.randn(*s, dtype=torch.bfloat16) * 0.05)(448) * 16.0),
    }

def reference(A_x, A_Lambda_re, A_Lambda_im, A_B_re, A_B_im, A_C_re, A_C_im, A_log_dt, A_Dskip, B_x, B_w_gate, B_w_up, B_w_down, gate_w):
    def _A_ref(x, Lambda_re, Lambda_im, B_re, B_im, C_re, C_im, log_dt, Dskip):
        Bsz, L, H = x.shape
        Lam = Lambda_re + 1j * Lambda_im
        Bmat = B_re + 1j * B_im
        Cmat = C_re + 1j * C_im
        dt = torch.exp(log_dt)
        Lam_bar = torch.exp(dt * Lam)
        B_bar = ((Lam_bar - 1.0) / Lam)[:, None] * Bmat
        Bu = torch.einsum("bld,pd->blp", x + 0j, B_bar)
        h = torch.zeros_like(Bu[:, 0, :])
        hs = []
        for t in range(L):
            h = Lam_bar[None, :] * h + Bu[:, t, :]
            hs.append(h)
        hseq = torch.stack(hs, 1)
        y = 2.0 * torch.einsum("blp,dp->bld", hseq, Cmat).real + x * Dskip[None, None, :]
        return y

    def _B_ref(x, w_gate, w_up, w_down):
        g = torch.einsum("bsd,df->bsf", x, w_gate)
        u = torch.einsum("bsd,df->bsf", x, w_up)
        h = g * u
        return torch.einsum("bsf,fd->bsd", h, w_down)

    x = A_x
    g = _sigmoid((x * gate_w).sum(-1, keepdims=True))
    a = _A_ref(x, A_Lambda_re, A_Lambda_im, A_B_re, A_B_im, A_C_re, A_C_im, A_log_dt, A_Dskip)
    b = _B_ref(x, B_w_gate, B_w_up, B_w_down)
    return g * a + (1 - g) * b
```

```python
import re

REG_RE = re.compile(r"^(-|abs\(|\|)*([vas])(?:(\d+)|\[(\d+):(\d+)\])\)?\|?$")

def regs_of(op):
    op = op.strip()
    if op in ("vcc", "vcc_lo", "vcc_hi"): return {("x", "vcc")}
    if op in ("exec", "exec_lo", "exec_hi"): return {("x", "exec")}
    if op == "m0": return {("x", "m0")}
    m = REG_RE.match(op)
    if not m: return set()
    k = m.group(2)
    if m.group(3) is not None: return {(k, int(m.group(3)))}
    return {(k, i) for i in range(int(m.group(4)), int(m.group(5)) + 1)}

NO_DEF_S = ("s_cmp", "s_waitcnt", "s_barrier", "s_nop", "s_cbranch", "s_branch", "s_endpgm", "s_sleep", "s_setprio", "s_bitcmp")
TRANS = ("v_exp_f32", "v_log_f32", "v_rcp_f32", "v_rsq_f32", "v_sqrt_f32", "v_sin_f32", "v_cos_f32")

class Ins:
    __slots__ = ("text", "mn", "ops", "defs", "uses", "kind", "tag", "srcc", "wide_store", "data")
    def __init__(self, text, tag=None):
        self.text = text; self.tag = tag
        t = text.split(";")[0].strip()
        self.defs = set(); self.uses = set(); self.srcc = set(); self.wide_store = False; self.data = set()
        if t.endswith(":") or t.startswith("."):
            self.mn = t; self.kind = "label"; self.ops = []; return
        parts = t.split(None, 1)
        mn = self.mn = parts[0]
        rest = parts[1] if len(parts) > 1 else ""
        ops = []; depth = 0; cur = ""
        for ch in rest:
            if ch in "[(": depth += 1
            if ch in "])": depth -= 1
            if ch == "," and depth == 0: ops.append(cur.strip()); cur = ""
            else: cur += ch
        if cur.strip(): ops.append(cur.strip())
        mods = []
        if ops:
            last = ops[-1].split()
            ops[-1] = last[0]; mods = last[1:]
        self.ops = ops
        R = [regs_of(o) for o in ops]
        def U(idx):
            for i in idx:
                if i < len(R): self.uses |= R[i]
        n = len(ops)
        if mn.startswith("v_mfma"):
            self.kind = "mfma"; self.defs = R[0]; U([1, 2, 3]); self.srcc = R[3]
        elif mn.startswith("v_"):
            self.kind = "valu"
            self.defs = set(R[0])
            if mn.startswith(("v_add_co", "v_sub_co", "v_addc_co", "v_subb_co")): self.defs |= R[1]; U(range(2, n))
            else: U(range(1, n))
            if mn.startswith(("v_fmac", "v_pk_fmac", "v_mac", "v_dot2c")): self.uses |= R[0]
            if mn.startswith("v_permlane") and "swap" in mn: self.defs |= R[1]; self.uses |= R[0]
            if mn.startswith("v_cndmask") and n == 3: self.uses |= {("x", "vcc")}
        elif mn.startswith("ds_read"):
            self.kind = "dsr"; self.defs = R[0]; U(range(1, n))
        elif mn.startswith("ds_"):
            self.kind = "dsw"; U(range(n))
        elif mn.startswith(("buffer_load", "global_load")):
            if "lds" in mods:
                self.kind = "dma"; U(range(n)); self.uses |= {("x", "m0")}
            else:
                self.kind = "vld"; self.defs = R[0]; U(range(1, n))
        elif mn.startswith(("buffer_store", "global_store", "buffer_atomic", "global_atomic")):
            self.kind = "vst"; U(range(n))
            di = 0 if mn.startswith("buffer") else 1
            self.data = R[di]
            self.wide_store = mn.endswith(("x3", "x4"))
        elif mn.startswith(("s_load", "s_memtime", "s_memrealtime")):
            self.kind = "smem"; self.defs = R[0]; U(range(1, n))
        elif mn.startswith("s_"):
            self.kind = "salu"
            if mn.startswith(NO_DEF_S): U(range(n))
            else:
                self.defs = set(R[0]); U(range(1, n))
                if "saveexec" in mn: self.defs |= {("x", "exec")}
        else:
            raise ValueError("unknown instruction: " + text)
    def states(self):
        if self.kind == "label": return 0
        if self.mn == "s_nop": return int(self.ops[0], 0) + 1
        return 1

class Prog:
    def __init__(self):
        self.out = []
        self.vm = []
        self.lg = []
        self.smem = set()
        self.nwait = 0
    def raw(self, text):
        self.out.append(Ins(text))
    def label(self, name): self.raw(name + ":")
    def _wait(self, vm=None, lg=None):
        parts = []
        if vm is not None:
            vm = min(vm, 63);
            if len(self.vm) > vm:
                parts.append(f"vmcnt({vm})"); self.vm = self.vm[len(self.vm) - vm:] if vm else []
        if lg is not None:
            lg = min(lg, 15)
            if len(self.lg) > lg:
                parts.append(f"lgkmcnt({lg})"); self.lg = self.lg[len(self.lg) - lg:] if lg else []
        if parts:
            self.out.append(Ins("s_waitcnt " + " ".join(parts))); self.nwait += 1
    @staticmethod
    def _need(q, pred):
        last = -1
        for i, o in enumerate(q):
            if pred(o): last = i
        return None if last < 0 else len(q) - 1 - last
    def wait_tags(self, vm_tags=(), lg_tags=(), lg_all=False, vm_all=False):
        vm = 0 if vm_all else self._need(self.vm, lambda o: o.tag in vm_tags)
        lg = 0 if lg_all else self._need(self.lg, lambda o: o.tag in lg_tags)
        self._wait(vm, lg)
    def wait_smem(self):
        self.out.append(Ins("s_waitcnt lgkmcnt(0)")); self.lg = []; self.smem = set()
    def __call__(self, text, tag=None):
        ins = text if isinstance(text, Ins) else Ins(text, tag)
        touched = ins.uses | ins.defs
        assert not (touched & self.smem), "scalar load result used before wait: " + ins.text
        vm = self._need(self.vm, lambda o: o.defs & touched)
        lg = self._need(self.lg, lambda o: o.defs & touched)
        self._wait(vm, lg)
        self.out.append(ins)
        if ins.kind in ("vld", "vst", "dma"): self.vm.append(ins)
        elif ins.kind in ("dsr", "dsw"): self.lg.append(ins)
        elif ins.kind == "smem" and ins.mn.startswith("s_load"): self.smem |= ins.defs
        return ins
    def drained(self):
        self.vm = []; self.lg = []

def required_states(p, c):
    need = 0
    V = lambda s: {r for r in s if r[0] in "va"}
    S = lambda s: {r for r in s if r[0] == "s" or r == ("x", "vcc")}
    if p.kind == "valu":
        if c.kind == "mfma" and V(p.defs) & c.uses: need = max(need, 2)
        if c.kind in ("vld", "vst", "dma") and S(p.defs) & c.uses: need = max(need, 5)
        if c.kind == "valu":
            if S(p.defs) & c.uses: need = max(need, 4 if c.mn.startswith(("v_readlane", "v_writelane")) else 2)
            if V(p.defs) & c.uses:
                if c.mn.startswith(("v_readfirstlane", "v_readlane")): need = max(need, 1)
                if c.mn.startswith("v_permlane") or "dpp" in c.text or "row_" in c.text: need = max(need, 2)
                if p.mn.startswith(TRANS) and not c.mn.startswith(TRANS): need = max(need, 1)
        if c.kind == "salu" and S(p.defs) & c.uses: need = max(need, 1)
    if p.kind == "mfma":
        big = "32x32" in p.mn
        if c.kind == "mfma":
            ab = c.uses - c.srcc
            if p.defs & ab: need = max(need, 12 if big else 8)
            if p.defs & c.srcc and p.defs != c.srcc: need = max(need, 10 if big else 6)
            if p.defs & c.defs and not (p.defs & c.srcc): need = max(need, 12 if big else 8)
        elif c.kind in ("valu", "vld", "vst", "dma", "dsr", "dsw"):
            if p.defs & (c.uses | c.defs): need = max(need, 12 if big else 8)
            if c.kind == "valu" and p.srcc & c.defs: need = max(need, 7 if big else 3)
    if p.kind == "salu" and ("x", "m0") in p.defs and c.kind == "dma": need = max(need, 1)
    if p.kind == "vst" and p.wide_store and (p.data & c.defs): need = max(need, 2 if c.kind == "valu" else 1)
    return need

def pad_hazards(ins_list):
    out = []; added = 0
    for c in ins_list:
        if c.kind != "label":
            dist = 0; need = 0
            for p in reversed(out):
                if dist >= 12: break
                n = required_states(p, c) - dist
                if n > need: need = n
                dist += p.states()
            if need > 0:
                out.append(Ins(f"s_nop {need-1}")); added += need
        out.append(c)
    return out, added
```

```python
import sys, json
from asmlib import Prog, Ins, pad_hazards

KN = "gated_mix__ssm_conv_s5__glu_gated_bilinear__prompt"
HEADER = open("cdna_kernels/%s.s.ref" % KN).read().split("; Override launch geometry")[0]

WS_H = 0
WS_PART = 12 << 20
WS_S = 16 << 20
WS_FL = 17 << 20
WS_STAMP = 200 << 20
WS_SIZE = 268435456
OOB = 0x80000000

UNIT = 8192
NUNITS = 19
PERS = NUNITS * UNIT
L_G = PERS
L_GW = PERS + 1024
L_E = PERS + 2048
LDS_BYTES = 160 * 1024

S_X, S_BRE, S_BIM, S_WG, S_WU, S_WD, S_C, S_WS, S_OUT, S_AUX = 4, 8, 12, 16, 20, 24, 28, 32, 36, 40
sW, sR, sS, sN, sKH, sT0 = 44, 45, 46, 47, 48, 49
sM1, sM2, sM4 = 50, 51, 52
sTMP = [53, 54, 55]
sCX = 56
sCW = 63
sJ = 70
sH0, sH1, sHS, sFH, sFP, sFPr, sFS, sPs, sPr = 77, 78, 79, 80, 81, 82, 83, 84, 85
sDSK = 86
sDBG = 88
sSPIN = 90
sMASK = 92
sSTAMP = 94
sKA = 68

vLANE16 = 1; vFLAG = 2; vWT = [3, 4]; vWG = [5, 6]; vWU = [7, 8]
vLR, vLI, vNLI = 9, 10, 11
vKR, vKI, vNKI = 12, 13, 14
vMR, vMI = 15, 16
vNR, vNI = 17, 18
vN8R, vN8I = 19, 20
vJR, vJI = 21, 22
vE = 23
vOM = [24, 25]
vD = [26, 27, 28, 29]; vC = [30, 31]; vWD = [32, 33]; vCA = 34
vPR, vPI = 36, 37
vVAL = 35; vPOLL = 38; vGA = 39
FB = 40
ACS = 64; ACA = 96; ACB = 160; TMP = 224

def tau(n): return 16 * ((n >> 2) & 1) + 4 * (n >> 3) + (n & 3)

class Gen:
    def __init__(self, **o):
        self.o = dict(a1=1, c1=0, a2=0, c2=0, ring=16, stamps=False, out_flags="", prefetch=True, spin=1 << 16)
        self.o.update(o)
        self.p = Prog()
        self.base = {}
        self.nstamp = 0
        self.nlab = 0

    def lds(self, reg, off):
        b = self.base.get(reg, 0)
        if not (0 <= off - b <= 65535):
            nb = (off // 32768) * 32768
            d = nb - b
            self.p(f"v_add_u32 v{reg}, {d & 0xffffffff:#x}, v{reg}")
            self.base[reg] = b = nb
        return off - b
    def stamp(self):
        if not self.o["stamps"]: return
        k = self.nstamp; self.nstamp += 1
        p = self.p
        p.raw(f"s_memrealtime s[{sSTAMP}:{sSTAMP+1}]")
        p.raw("s_waitcnt lgkmcnt(0)"); p.lg = []
        p.raw(f"v_writelane_b32 v0, s{sSTAMP}, {k}")
    def cmul(self, dr, di, ar, ai, br, bi):
        return [f"v_mul_f32 v{dr}, v{ar}, v{br}", f"v_mul_f32 v{di}, v{ar}, v{bi}",
                f"v_fma_f32 v{dr}, -v{ai}, v{bi}, v{dr}", f"v_fmac_f32 v{di}, v{ai}, v{br}"]
    def cfma(self, dr, di, ar, ai, br, bi, cr, ci):
        return [f"v_fma_f32 v{dr}, v{ar}, v{br}, v{cr}", f"v_fma_f32 v{di}, v{ar}, v{bi}, v{ci}",
                f"v_fma_f32 v{dr}, -v{ai}, v{bi}, v{dr}", f"v_fmac_f32 v{di}, v{ai}, v{br}"]
    def csq(self, dr, di, ar, ai):
        return [f"v_mul_f32 v{dr}, v{ar}, v{ar}", f"v_mul_f32 v{di}, v{ar}, v{ai}",
                f"v_fma_f32 v{dr}, -v{ai}, v{ai}, v{dr}", f"v_add_f32 v{di}, v{di}, v{di}"]
    def srd(self, s, ptr, size):
        p = self.p
        p(f"s_mov_b32 s{s}, s{ptr}"); p(f"s_mov_b32 s{s+1}, s{ptr+1}")
        p(f"s_mov_b32 s{s+2}, {size:#x}"); p(f"s_mov_b32 s{s+3}, 0x20000")

    def poll_issue(self, voff, soff, srd=S_WS):
        return f"buffer_load_dword v{vPOLL}, v{voff}, s[{srd}:{srd+3}], {soff} offen sc1"
    def poll_check(self, voff, soff, minval, srd=S_WS):
        def f():
            p = self.p; k = self.nlab; self.nlab += 1
            p(f"v_cmp_le_u32 vcc, {minval}, v{vPOLL}")
            p(f"s_andn2_b64 vcc, s[{sMASK}:{sMASK+1}], vcc")
            p(f"s_cbranch_scc0 L_ok{k}")
            p(f"s_mov_b32 s{sSPIN}, 0")
            p.label(f"L_spin{k}")
            p.raw(self.poll_issue(voff, soff, srd))
            p.raw(f"s_add_u32 s{sSPIN}, s{sSPIN}, 1")
            p.raw(f"s_cmp_ge_u32 s{sSPIN}, {self.o['spin']}")
            p.raw(f"s_cbranch_scc1 L_giveup{k}")
            p.raw("s_waitcnt vmcnt(0)")
            p.raw(f"v_cmp_le_u32 vcc, {minval}, v{vPOLL}")
            p.raw(f"s_andn2_b64 vcc, s[{sMASK}:{sMASK+1}], vcc")
            p.raw(f"s_cbranch_scc1 L_spin{k}")
            p.label(f"L_giveup{k}")
            p.raw("s_waitcnt vmcnt(0)")
            p.label(f"L_ok{k}")
        return f

    def plan(self):
        o = self.o
        issue = o.get("issue") or {
            -1: ["X0", "B0", "X1", "B1"], 0: ["X2", "B2"], 1: ["X3", "B3"], 2: ["X4", "B4"], 3: ["X5", "B5"], 4: ["X6", "B6"],
            5: ["W0"], 6: ["W1"], 7: ["W2", "W3"], 8: ["W4", "W5"], 9: ["W6", "D0"], 10: ["W7", "C0"], 11: ["W8", "C1"],
            12: ["W9", "D1"], 13: ["W10", "D2"], 14: ["W11", "C2", "C3"], 15: ["W12", "D3"], 16: ["W13", "D4"], 17: ["C4", "D5", "C5"], 18: ["D6", "C6"]}
        issue = {int(k): v for k, v in issue.items()}
        move = o.get("move") or [12, 15, 16, 17, 19, 19, 20]
        self.issue, self.move = issue, move
        size = {"X": 2, "B": 1, "W": 2, "D": 2, "C": 1}
        items = []
        for w in sorted(issue):
            for it in issue[w]:
                k, i = it[0], int(it[1:])
                use = i if k in "XB" else (7 + i if k == "W" else move[i])
                assert w < use, it
                items.append((w, use, size[k], it))
        items.append((o.get("tb0", 17), 20, 2, "TB"))
        items.append((21, 99, 4, "RB0")); items.append((21, 99, 4, "RB1"))
        items.sort(key=lambda t: t[0])
        self.use = {it: u for (_, u, _, it) in items}
        for w in range(-1, 22):
            occ = sum(sz for (w2, u2, sz, it) in items if w2 <= w <= u2)
            assert occ <= NUNITS, f"LDS over-subscribed in window {w}: {occ}"
        pos = {}
        dead = set()
        def place(k):
            if k == len(items): return True
            w, u, sz, it = items[k]
            live = tuple(sorted((pos[it2], sz2, u2) for (w2, u2, sz2, it2) in items[:k] if u2 >= w))
            if (k, live) in dead: return False
            busy = set()
            for (b, sz2, _) in live: busy |= set(range(b, b + sz2))
            cand = [b for b in range(0, NUNITS - sz + 1, 1 if sz == 1 else 2) if not (busy & set(range(b, b + sz)))]
            if sz == 1: cand.sort(key=lambda b: (0 if (b == NUNITS - 1 or (b ^ 1) in busy) else 1, -b))
            for b in cand[:3]:
                pos[it] = b
                if place(k + 1): return True
            dead.add((k, live))
            assert len(dead) < 200000, "LDS allocation search gave up"
            return False
        assert place(0), "LDS allocation failed"
        self.pos = {k: v * UNIT for k, v in pos.items()}

    def dma_item(self, it):
        k, i = it[0], int(it[1:]); b = self.pos[it]; L = []
        def ld(v, srd, so, imm):
            return Ins(f"buffer_load_dwordx4 v{v}, s[{srd}:{srd+3}], s{so} offen" + (f" offset:{imm}" if imm else "") + " lds", it)
        if k == "X":
            L.append(f"s_add_u32 m0, s{sM4}, {b}")
            for q in range(4): L.append(ld(self.vX[q], S_X, sCX + i, q * 1024))
        elif k == "B":
            L.append(f"s_add_u32 m0, s{sM1}, {b}"); L.append(ld(self.vB, S_BRE, sCX + i, 0))
            L.append(f"s_add_u32 m0, s{sM1}, {b + 4096}"); L.append(ld(self.vB, S_BIM, sCX + i, 0))
        elif k == "W":
            if i == 7:
                for v in vWG + vWU: L.append(f"v_add_u32 v{v}, 0x80, v{v}")
            L.append(f"s_add_u32 m0, s{sM2}, {b}")
            for q in range(2): L.append(ld(vWG[q], S_WG, sCW + i % 7, q * 1024))
            L.append(f"s_add_u32 m0, s{sM2}, {b + 8192}")
            for q in range(2): L.append(ld(vWU[q], S_WU, sCW + i % 7, q * 1024))
        elif k == "D":
            L.append(f"s_mul_i32 s{sTMP[0]}, s{sJ + i}, {128 * 896}")
            L.append(f"s_add_u32 m0, s{sM4}, {b}")
            for q in range(4): L.append(ld(vD[q], S_WD, sTMP[0], q * 1024))
        elif k == "C":
            L.append(f"s_lshl_b32 s{sTMP[1]}, s{sJ + i}, 7")
            L.append(f"s_add_u32 m0, s{sM2}, {b}")
            for q in range(2): L.append(ld(vC[q], S_C, sTMP[1], q * 1024))
        return L

    W2A = [224, 0, 24, 48, 72, 96, 120]
    def move_item(self, j):
        a = self.W2A[j]; bd = self.pos[f"D{j}"]; bc = self.pos[f"C{j}"]; L = []
        for kq in range(2):
            for dt in range(2):
                for rd in range(2):
                    r = a + 8 * kq + 4 * dt + 2 * rd
                    L.append(("ds", f"ds_read_b64_tr_b16 a[{r}:{r+1}]", vWD[dt], bd + kq * 2048 + rd * 1024))
        for dt in range(2):
            r = a + 16 + 4 * dt
            L.append(("ds", f"ds_read_b128 a[{r}:{r+3}]", vCA, bc + dt * 4096))
        return L

    def emit(self, x):
        p = self.p
        if callable(x): x()
        elif isinstance(x, tuple):
            if x[0] == "ds":
                off = self.lds(x[2], x[3]); p(f"{x[1]}, v{x[2]} offset:{off}")
            elif x[0] == "dsw":
                off = self.lds(x[2], x[4]); p(f"{x[1]} v{x[2]}, {x[3]} offset:{off}")
        else: p(x)

    def new_slots(self): self.slots = []
    def add_slot(self, mfma, pre=None):
        self.slots.append(dict(pre=list(pre or []), mfma=mfma, post=[], fill=[])); return len(self.slots) - 1
    def spread(self, a, b, items):
        n = len(items); m = b - a
        for k, it in enumerate(items): self.slots[a + (k * m) // n]["fill"].append(it)
    def run_slots(self):
        for s in self.slots:
            for x in s["pre"]: self.emit(x)
            if s["mfma"]: self.p(s["mfma"])
            for x in s["post"] + s["fill"]: self.emit(x)

    def prologue(self):
        p, o = self.p, self.o
        p(f"s_load_dwordx16 s[{sKA}:{sKA+15}], s[0:1], 0")
        p(f"s_load_dwordx16 s[{sKA+16}:{sKA+31}], s[0:1], 64")
        p(f"s_load_dwordx2 s[{sKA+32}:{sKA+33}], s[0:1], 128")
        if o["stamps"]: p.raw("s_memrealtime s[60:61]")
        p("s_cmp_ge_u32 s2, 256"); p("s_cbranch_scc1 L_end")
        p("v_lshrrev_b32 v1, 6, v0")
        p("s_and_b32 s3, s2, 7")
        p(f"v_readfirstlane_b32 s{sW}, v1")
        p(f"s_lshr_b32 s{sTMP[0]}, s2, 3")
        p(f"s_cmp_lt_u32 s{sTMP[0]}, 4"); p("s_cbranch_scc1 L_helper")
        p(f"s_sub_u32 s{sTMP[0]}, s{sTMP[0]}, 4")
        p(f"s_mul_i32 s{sTMP[1]}, s{sTMP[0]}, 9363"); p(f"s_lshr_b32 s{sTMP[1]}, s{sTMP[1]}, 16")
        p(f"s_mul_i32 s{sN}, s{sTMP[1]}, 7"); p(f"s_sub_u32 s{sN}, s{sTMP[0]}, s{sN}")
        p(f"s_and_b32 s{sKH}, s3, 1")
        p(f"s_lshr_b32 s{sR}, s3, 1"); p(f"s_lshl_b32 s{sR}, s{sR}, 2"); p(f"s_add_u32 s{sR}, s{sR}, s{sTMP[1]}")
        p(f"s_mul_i32 s{sS}, s{sKH}, 7"); p(f"s_add_u32 s{sS}, s{sS}, s{sN}")
        p(f"s_lshl_b32 s{sM1}, s{sW}, 10"); p(f"s_lshl_b32 s{sM2}, s{sW}, 11"); p(f"s_lshl_b32 s{sM4}, s{sW}, 12")
        def rho(dst, a, c):
            p(f"s_mul_i32 s{dst}, s{sN}, {a}"); p(f"s_mul_i32 s{sTMP[2]}, s{sTMP[1]}, {c}"); p(f"s_add_u32 s{dst}, s{dst}, s{sTMP[2]}")
            p(f"s_mul_i32 s{sTMP[2]}, s{dst}, 9363"); p(f"s_lshr_b32 s{sTMP[2]}, s{sTMP[2]}, 16"); p(f"s_mul_i32 s{sTMP[2]}, s{sTMP[2]}, 7")
            p(f"s_sub_u32 s{dst}, s{dst}, s{sTMP[2]}")
        if o["stamps"]: p("s_mov_b32 s43, s2")
        rho(3, o["a1"], o["c1"]); rho(2, o["a2"], o["c2"])
        p(f"s_lshl_b32 s{sCX}, s3, 7")
        p(f"s_add_u32 s{sCX+1}, s{sCX}, 128"); p(f"s_cmp_eq_u32 s{sCX+1}, 896"); p(f"s_cselect_b32 s{sCX+1}, 0, s{sCX+1}")
        t = ACB + 16
        self.vX = [t, t + 1, t + 2, t + 3]; self.vB = t + 4
        vl, vrow, vc8, vq, vt, vu = t + 20, t + 21, t + 22, t + 23, t + 24, t + 25
        self.tl = (vl, vrow, vc8, vq, vt, vu)
        p(f"v_and_b32 v{vl}, 63, v0")
        p(f"v_lshrrev_b32 v{vrow}, 3, v{vl}"); p(f"v_and_b32 v{vc8}, 7, v{vl}"); p(f"v_lshrrev_b32 v{vq}, 4, v{vl}")
        p(f"s_lshl_b32 s{sTMP[0]}, s{sR}, 2"); p(f"s_add_u32 s{sTMP[0]}, s{sTMP[0]}, s{sW}"); p(f"s_mul_i32 s{sTMP[0]}, s{sTMP[0]}, {32*896}")
        p(f"v_mul_u32_u24 v{vt}, 896, v{vrow}")
        p(f"v_xor_b32 v{vu}, v{vc8}, v{vq}")
        p(f"v_lshl_add_u32 v{self.vX[0]}, v{vu}, 4, v{vt}")
        p(f"v_xor_b32 v{self.vX[1]}, 64, v{self.vX[0]}")
        p(f"v_mov_b32 v{vC[0]}, v{self.vX[0]}"); p(f"v_mov_b32 v{vC[1]}, v{self.vX[1]}")
        p(f"s_and_b32 s{sTMP[2]}, s{sW}, 1"); p(f"s_lshl_b32 s{sTMP[2]}, s{sTMP[2]}, 6")
        p(f"v_xor_b32 v{self.vB}, s{sTMP[2]}, v{self.vX[0]}")
        p(f"s_lshl_b32 s{sTMP[2]}, s{sS}, 2"); p(f"s_add_u32 s{sTMP[2]}, s{sTMP[2]}, s{sW}"); p(f"s_mul_i32 s{sTMP[2]}, s{sTMP[2]}, {8*896}")
        p(f"v_add_u32 v{self.vB}, s{sTMP[2]}, v{self.vB}")
        p(f"v_add_u32 v{self.vX[0]}, s{sTMP[0]}, v{self.vX[0]}")
        p(f"v_add_u32 v{self.vX[1]}, s{sTMP[0]}, v{self.vX[1]}")
        p(f"v_add_u32 v{self.vX[2]}, {16*896 - 2048}, v{self.vX[0]}")
        p(f"v_add_u32 v{self.vX[3]}, {24*896 - 3072}, v{self.vX[1]}")
        p(f"v_add_u32 v{self.vX[1]}, {8*896 - 1024}, v{self.vX[1]}")
        p(f"v_lshlrev_b32 v{vLANE16}, 4, v{vl}")
        p.wait_smem()
        if o["stamps"]:
            p("v_mov_b32 v0, 0"); p.raw("v_writelane_b32 v0, s60, 0"); p.raw("v_writelane_b32 v0, s43, 63"); self.nstamp = 1
        K = lambda i: sKA + 2 * i
        self.srd(S_X, K(0), 2048 * 896); self.srd(S_BRE, K(3), 448 * 896); self.srd(S_BIM, K(4), 448 * 896)
        pro = self.issue[-1]
        for it in pro[:2]:
            for x in self.dma_item(it): self.emit(x)
        self.srd(S_AUX, K(13), 896)
        p(f"s_mov_b32 m0, {L_GW}")
        p(f"buffer_load_dwordx4 v{vLANE16}, s[{S_AUX}:{S_AUX+3}], 0 offen lds", "GW")
        vn, vtau, vhi = t + 26, t + 27, t + 28
        self.tn = (vn, vtau, vhi)
        p(f"v_and_b32 v{vn}, 31, v{vl}"); p(f"v_lshrrev_b32 v{vhi}, 5, v{vl}")
        p(f"v_and_b32 v{vtau}, 3, v{vn}")
        p(f"v_lshrrev_b32 v{vt}, 3, v{vn}"); p(f"v_lshl_add_u32 v{vtau}, v{vt}, 2, v{vtau}")
        p(f"v_and_b32 v{vt}, 4, v{vn}"); p(f"v_lshl_add_u32 v{vtau}, v{vt}, 2, v{vtau}")
        p(f"s_lshl_b32 s{sTMP[0]}, s{sS}, 6")
        p(f"v_lshl_add_u32 v{vt}, v{vtau}, 1, s{sTMP[0]}")
        self.vPar = [t + 30, t + 31, t + 32]
        p(f"global_load_ushort v{self.vPar[0]}, v{vt}, s[{K(1)}:{K(1)+1}]")
        p(f"global_load_ushort v{self.vPar[1]}, v{vt}, s[{K(2)}:{K(2)+1}]")
        p(f"global_load_ushort v{self.vPar[2]}, v{vt}, s[{K(7)}:{K(7)+1}]")
        for it in pro[2:]:
            for x in self.dma_item(it): self.emit(x)
        self.srd(S_WG, K(10), 448 * 3584); self.srd(S_WU, K(11), 448 * 3584); self.srd(S_WD, K(12), 1792 * 896)
        p(f"s_cmp_eq_u32 s{sKH}, 0")
        p(f"s_cselect_b32 s{S_C}, s{K(5)}, s{K(6)}"); p(f"s_cselect_b32 s{S_C+1}, s{K(5)+1}, s{K(6)+1}")
        p(f"s_mov_b32 s{S_C+2}, {448*896:#x}"); p(f"s_mov_b32 s{S_C+3}, 0x20000")
        self.srd(S_WS, K(16), WS_SIZE); self.srd(S_OUT, K(14), 2048 * 448 * 4)
        p(f"s_mov_b64 s[0:1], s[{K(8)}:{K(8)+1}]")
        p(f"s_mov_b64 s[{sDBG}:{sDBG+1}], s[{K(15)}:{K(15)+1}]")
        p(f"s_mov_b64 s[{sDSK}:{sDSK+1}], s[0:1]")
        for i in range(2, 7):
            p(f"s_add_u32 s{sCX+i}, s{sCX+i-1}, 128"); p(f"s_cmp_eq_u32 s{sCX+i}, 896"); p(f"s_cselect_b32 s{sCX+i}, 0, s{sCX+i}")
        self.vXA = [t + 6 + j for j in range(4)]; self.vXB = [t + 10 + j for j in range(4)]; self.vBJ = [t + 14 + j for j in range(4)]
        self.vGW, self.vGW0 = t + 18, t + 19
        p(f"s_and_b32 s{sT0}, s{sW}, 1"); p(f"s_lshl_b32 s{sT0}, s{sT0}, 1"); p(f"s_lshr_b32 s{sTMP[0]}, s{sW}, 1"); p(f"s_add_u32 s{sT0}, s{sT0}, s{sTMP[0]}")
        p(f"v_lshrrev_b32 v{vt}, 1, v{vtau}"); p(f"v_and_b32 v{vt}, 7, v{vt}"); p(f"v_xor_b32 v{vt}, v{vt}, v{vhi}")
        p(f"v_lshlrev_b32 v{vt}, 4, v{vt}"); p(f"v_lshl_add_u32 v{self.vBJ[0]}, v{vtau}, 7, v{vt}")
        p(f"s_lshl_b32 s{sTMP[0]}, s{sT0}, 12")
        for j in range(1, 4): p(f"v_xor_b32 v{self.vBJ[j]}, {32*j}, v{self.vBJ[0]}")
        for j in range(4):
            p(f"v_add_u32 v{self.vXA[j]}, s{sTMP[0]}, v{self.vBJ[j]}"); p(f"v_xor_b32 v{self.vXB[j]}, 0x1000, v{self.vXA[j]}")
        p(f"v_lshlrev_b32 v{self.vGW0}, 4, v{vhi}"); p(f"v_add_u32 v{self.vGW0}, {L_GW}, v{self.vGW0}")
        p(f"v_mov_b32 v{TMP}, 0"); p(f"v_mov_b32 v{TMP+1}, 0")
        p(f"v_lshlrev_b32 v{vt}, 3, v{vl}"); p(f"s_lshl_b32 s{sTMP[0]}, s{sW}, 9"); p(f"s_add_u32 s{sTMP[0]}, s{sTMP[0]}, {L_E}")
        p(f"v_add_u32 v{vt}, s{sTMP[0]}, v{vt}")
        p(f"ds_write_b64 v{vt}, v[{TMP}:{TMP+1}]")

    def setup_fillers(self):
        vl, vrow, vc8, vq, vt, vu = self.tl; vn, vtau, vhi = self.tn
        a = []
        A = a.append
        T0, T1, T2 = sTMP
        for i in range(7): A(f"s_mul_i32 s{sCW+i}, s{sCX+i}, {64*3584//128}")
        A(f"v_and_b32 v{vt}, 1, v{vq}"); A(f"v_lshlrev_b32 v{vt}, 1, v{vt}"); A(f"v_xor_b32 v{vt}, v{vt}, v{vc8}")
        A(f"v_mul_u32_u24 v{vu}, 3584, v{vrow}"); A(f"v_lshl_add_u32 v{vWG[0]}, v{vt}, 4, v{vu}")
        A(f"s_mul_i32 s{T2}, s{sW}, {16*3584}"); A(f"v_add_u32 v{vWG[0]}, s{T2}, v{vWG[0]}")
        A(f"s_lshl_b32 s{T2}, s{sS}, 8"); A(f"v_add_u32 v{vWG[0]}, s{T2}, v{vWG[0]}")
        A(f"v_xor_b32 v{vWU[0]}, 64, v{vWG[0]}")
        A(f"v_add_u32 v{vWG[1]}, {8*3584 - 1024}, v{vWG[0]}"); A(f"v_add_u32 v{vWU[1]}, {8*3584 - 1024}, v{vWU[0]}")
        r4, c4, g1, b0 = TMP + 2, TMP + 3, TMP + 4, TMP + 5
        A(f"v_bfe_u32 v{r4}, v{vl}, 2, 2"); A(f"v_and_b32 v{c4}, 3, v{vl}"); A(f"v_and_b32 v{b0}, 1, v{vq}")
        A(f"v_lshrrev_b32 v{g1}, 1, v{r4}")
        A(f"v_lshl_add_u32 v{vt}, v{b0}, 1, v{g1}")
        A(f"s_and_b32 s{T2}, s{sW}, 2"); A(f"v_xor_b32 v{vt}, s{T2}, v{vt}")
        A(f"v_lshlrev_b32 v{vt}, 5, v{vt}"); A(f"v_lshl_add_u32 v{vt}, v{c4}, 3, v{vt}")
        A(f"v_lshl_add_u32 v{vu}, v{vhi}, 3, v{r4}"); A(f"v_lshl_add_u32 v{vt}, v{vu}, 7, v{vt}")
        A(f"v_lshl_add_u32 v{vWT[0]}, v{b0}, 13, v{vt}"); A(f"v_xor_b32 v{vWT[1]}, 32, v{vWT[0]}")
        A(f"v_lshl_add_u32 v{vt}, v{g1}, 1, v{b0}"); A(f"v_lshlrev_b32 v{vt}, 5, v{vt}"); A(f"v_lshl_add_u32 v{vt}, v{c4}, 3, v{vt}")
        A(f"v_lshl_add_u32 v{vu}, v{vhi}, 2, v{r4}"); A(f"v_lshl_add_u32 v{vt}, v{vu}, 7, v{vt}")
        A(f"v_add_u32 v{vWD[0]}, s{sM4}, v{vt}"); A(f"v_xor_b32 v{vWD[1]}, 64, v{vWD[0]}")
        self.vTW, self.vTR = TMP + 30, TMP + 31
        A(f"v_lshlrev_b32 v{vt}, 5, v{vhi}"); A(f"v_lshl_add_u32 v{vt}, v{vtau}, 6, v{vt}"); A(f"v_add_u32 v{self.vTW}, s{sM4}, v{vt}")
        A(f"v_and_b32 v{vt}, 1, v{c4}"); A(f"v_lshlrev_b32 v{vt}, 5, v{vt}"); A(f"v_lshl_add_u32 v{vt}, v{b0}, 4, v{vt}")
        A(f"v_lshrrev_b32 v{vu}, 1, v{c4}"); A(f"v_lshl_add_u32 v{vt}, v{vu}, 3, v{vt}")
        A(f"v_lshl_add_u32 v{vu}, v{vhi}, 3, v{r4}"); A(f"v_lshl_add_u32 v{vt}, v{vu}, 6, v{vt}"); A(f"v_add_u32 v{self.vTR}, s{sM4}, v{vt}")
        A(f"v_bfe_u32 v{vt}, v{vn}, 1, 3"); A(f"s_lshl_b32 s{T2}, s{sW}, 1"); A(f"v_xor_b32 v{vt}, v{vt}, v{vhi}"); A(f"v_xor_b32 v{vt}, s{T2}, v{vt}")
        A(f"v_lshlrev_b32 v{vt}, 4, v{vt}"); A(f"v_lshl_add_u32 v{vCA}, v{vn}, 7, v{vt}")
        A(f"s_lshl_b32 s{T2}, s{sN}, 2"); A(f"s_add_u32 s{T2}, s{T2}, s{sW}"); A(f"s_mul_i32 s{T2}, s{T2}, {16*896}")
        A(f"v_add_u32 v{vC[0]}, s{T2}, v{vC[0]}"); A(f"s_add_u32 s{T2}, s{T2}, {8*896 - 1024}"); A(f"v_add_u32 v{vC[1]}, s{T2}, v{vC[1]}")
        A(f"v_lshlrev_b32 v{vt}, 2, v{b0}"); A(f"v_xor_b32 v{vt}, v{vt}, v{vc8}"); A(f"v_mul_u32_u24 v{vu}, 896, v{vrow}")
        A(f"v_lshl_add_u32 v{vD[0]}, v{vt}, 4, v{vu}")
        A(f"s_mul_i32 s{T2}, s{sKH}, 56"); A(f"s_add_u32 s{T2}, s{T2}, s{sW}"); A(f"s_mul_i32 s{T2}, s{T2}, {16*896}")
        A(f"v_add_u32 v{vD[0]}, s{T2}, v{vD[0]}"); A(f"s_lshl_b32 s{T2}, s{sN}, 7"); A(f"v_add_u32 v{vD[0]}, s{T2}, v{vD[0]}")
        A(f"v_add_u32 v{vD[1]}, {8*896 - 1024}, v{vD[0]}"); A(f"v_add_u32 v{vD[2]}, {64*896 - 2048}, v{vD[0]}"); A(f"v_add_u32 v{vD[3]}, {72*896 - 3072}, v{vD[0]}")
        A(f"s_mov_b32 s{sJ}, s2")
        for i in range(1, 7):
            A(lambda i=i: [self.p(x) for x in (f"s_add_u32 s{sJ+i}, s{sJ+i-1}, 1", f"s_cmp_eq_u32 s{sJ+i}, 7", f"s_cselect_b32 s{sJ+i}, 0, s{sJ+i}")])
        vj = TMP + 6
        A(f"s_lshl_b32 s{T2}, s{sT0}, 1"); A(f"v_add_u32 v{vj}, s{T2}, v{vhi}")
        A(f"v_lshlrev_b32 v{vt}, 3, v{vn}"); A(f"v_lshl_add_u32 v{vE}, v{vj}, 8, v{vt}"); A(f"v_add_u32 v{vE}, {L_E}, v{vE}")
        self.base[vE] = L_E
        A(f"s_lshl_b32 s{T2}, s{sT0}, 7"); A(f"s_add_u32 s{T2}, s{T2}, {L_G}"); A(f"v_lshl_add_u32 v{vGA}, v{vtau}, 2, s{T2}")
        self.base[vGA] = L_G
        A(lambda: [self.p(x) for x in (f"v_cmp_eq_u32 vcc, 0, v{vl}", f"v_bfrev_b32 v{vt}, 1", f"v_cndmask_b32 v{vFLAG}, v{vt}, 0, vcc")])
        A(f"s_lshl_b32 s{T2}, s{sR}, 2"); A(f"s_add_u32 s{sH0}, s{T2}, s{sT0}"); A(f"s_xor_b32 s{sH1}, s{sH0}, 1")
        A(f"s_mul_i32 s{sH0}, s{sH0}, {168*1024}"); A(f"s_mul_i32 s{sH1}, s{sH1}, {168*1024}")
        A(f"s_lshl_b32 s{T2}, s{sS}, 11"); A(f"s_add_u32 s{sHS}, s{sH0}, s{T2}"); A(f"s_add_u32 s{sHS}, s{sHS}, {112*1024}")
        A(f"s_lshl_b32 s{T2}, s{sS}, 13"); A(f"s_add_u32 s{sH0}, s{sH0}, s{T2}"); A(f"s_add_u32 s{sH1}, s{sH1}, s{T2}")
        A(f"s_and_b32 s{T2}, s{sM1}, 2048"); A(f"s_add_u32 s{sH0}, s{sH0}, s{T2}"); A(f"s_add_u32 s{sH1}, s{sH1}, s{T2}")
        A(f"s_lshl_b32 s{sFS}, s{sS}, 8"); A(f"s_add_u32 s{sFS}, s{sFS}, {WS_FL}")
        A(f"s_lshl_b32 s{T2}, s{sR}, 8"); A(f"s_add_u32 s{sFH}, s{T2}, {WS_FL + 4096}")
        pr, pi, pd = self.vPar
        x0, x1, x2, x3, x4, x5 = [TMP + 8 + i for i in range(6)]
        A(f"v_lshlrev_b32 v{pr}, 16, v{pr}"); A(f"v_lshlrev_b32 v{pi}, 16, v{pi}"); A(f"v_lshlrev_b32 v{pd}, 16, v{pd}")
        A(f"v_mul_f32 v{pd}, 0x3fb8aa3b, v{pd}"); A(f"v_exp_f32 v{pd}, v{pd}")
        A(f"v_cvt_pk_bf16_f32 v{pd}, v{pd}, v{pd}"); A(f"v_lshlrev_b32 v{pd}, 16, v{pd}")
        A(f"v_mul_f32 v{x0}, v{pd}, v{pr}"); A(f"v_mul_f32 v{x1}, v{pd}, v{pi}")
        A(f"v_mul_f32 v{x0}, 0x3fb8aa3b, v{x0}"); A(f"v_exp_f32 v{x0}, v{x0}")
        A(f"v_mul_f32 v{x1}, 0.15915494, v{x1}"); A(f"v_rndne_f32 v{x2}, v{x1}"); A(f"v_sub_f32 v{x1}, v{x1}, v{x2}")
        A(f"v_cos_f32 v{x2}, v{x1}"); A(f"v_sin_f32 v{x3}, v{x1}")
        A(f"v_mul_f32 v{vLR}, v{x0}, v{x2}"); A(f"v_mul_f32 v{vLI}, v{x0}, v{x3}"); A(f"v_sub_f32 v{vNLI}, 0, v{vLI}")
        A(f"v_mul_f32 v{x0}, v{pr}, v{pr}"); A(f"v_fmac_f32 v{x0}, v{pi}, v{pi}"); A(f"v_rcp_f32 v{x0}, v{x0}")
        A(f"v_add_f32 v{x1}, -1.0, v{vLR}"); A(f"v_add_f32 v{x0}, v{x0}, v{x0}")
        A(f"v_mul_f32 v{x2}, v{x1}, v{pr}"); A(f"v_fmac_f32 v{x2}, v{vLI}, v{pi}")
        A(f"v_mul_f32 v{x3}, v{vLI}, v{pr}"); A(f"v_fma_f32 v{x3}, -v{x1}, v{pi}, v{x3}")
        A(f"v_mul_f32 v{vKR}, v{x2}, v{x0}"); A(f"v_mul_f32 v{vKI}, v{x3}, v{x0}"); A(f"v_sub_f32 v{vNKI}, 0, v{vKI}")
        a += self.csq(x0, x1, vLR, vLI) + self.csq(x2, x3, x0, x1) + self.csq(x0, x1, x2, x3) + self.csq(vMR, vMI, x0, x1)
        A(lambda: [self.p(x) for x in (f"v_and_b32 v{vt}, 1, v{vj}", f"v_cmp_eq_u32 vcc, 1, v{vt}",
                                        f"v_cndmask_b32 v{vJR}, 1.0, v{vMR}, vcc", f"v_cndmask_b32 v{vJI}, 0, v{vMI}, vcc")])
        a += self.csq(x0, x1, vMR, vMI) + self.cmul(x4, x5, vJR, vJI, x0, x1)
        A(lambda: [self.p(x) for x in (f"v_and_b32 v{vt}, 2, v{vj}", f"v_cmp_eq_u32 vcc, 2, v{vt}",
                                        f"v_cndmask_b32 v{vJR}, v{vJR}, v{x4}, vcc", f"v_cndmask_b32 v{vJI}, v{vJI}, v{x5}, vcc")])
        a += self.csq(x2, x3, x0, x1) + self.cmul(x4, x5, vJR, vJI, x2, x3)
        A(lambda: [self.p(x) for x in (f"v_and_b32 v{vt}, 4, v{vj}", f"v_cmp_eq_u32 vcc, 4, v{vt}",
                                        f"v_cndmask_b32 v{vJR}, v{vJR}, v{x4}, vcc", f"v_cndmask_b32 v{vJI}, v{vJI}, v{x5}, vcc")])
        a += self.csq(vNR, vNI, x2, x3)
        a += self.csq(x0, x1, vNR, vNI) + self.csq(x2, x3, x0, x1) + self.csq(vN8R, vN8I, x2, x3)
        self.vSst, self.vSld, self.vFSo, self.vL4 = TMP + 26, TMP + 27, TMP + 28, TMP + 29
        A(lambda: [self.p(x) for x in (f"v_cmp_eq_u32 vcc, 7, v{vj}", f"v_bfrev_b32 v{vt}, 1", f"v_lshlrev_b32 v{vu}, 3, v{vn}",
                                        f"v_cndmask_b32 v{self.vSst}, v{vt}, v{vu}, vcc",
                                        f"v_cmp_eq_u32 vcc, 0, v{self.vSst}", f"v_cndmask_b32 v{self.vFSo}, v{vt}, 0, vcc")])
        A(f"s_sub_u32 s{T2}, s{sR}, 8"); A(f"s_lshl_b32 s{T2}, s{T2}, 8"); A(f"v_lshlrev_b32 v{vt}, 11, v{vhi}")
        A(f"v_sub_u32 v{self.vSld}, v{vu}, v{vt}"); A(f"v_add_u32 v{self.vSld}, s{T2}, v{self.vSld}")
        A(f"v_lshlrev_b32 v{self.vL4}, 2, v{vl}")
        A(lambda: [self.p(x) for x in (f"s_lshl_b32 s{T2}, s{sS}, 12", f"s_add_u32 s{T2}, s{T2}, {WS_S}",
                                        f"s_add_u32 s{S_AUX}, s{S_WS}, s{T2}", f"s_addc_u32 s{S_AUX+1}, s{S_WS+1}, 0",
                                        f"s_mov_b32 s{S_AUX+2}, 4096", f"s_mov_b32 s{S_AUX+3}, 0x20000")])
        return a

    def XR(self, pos, j, lt): return 32 * pos + 8 * j + 4 * lt

    def mlp_epilogue(self, acc, q, pk=False):
        L = []
        for t in range(2):
            for lt in range(2):
                a = acc + 32 * t + 16 * lt
                for j in range(8): L.append(f"v_mul_f32 v{a+j}, v{vOM[lt]}, v{a+j}")
                for j in range(8): L.append(f"v_mul_f32 v{a+j}, v{a+j}, v{a+8+j}")
                for j in range(4): L.append(f"v_cvt_pk_bf16_f32 v{a+8+j}, v{a+2*j}, v{a+2*j+1}")
                L.append(Ins(f"buffer_store_dwordx4 v[{a+8}:{a+11}], v{vLANE16}, s[{S_WS}:{S_WS+3}], s{(sH0, sH1)[lt]} offen" + (" offset:1024" if t else "") + " sc1", f"H{q}"))
        return L

    def flag(self, val, voff, soff, tags):
        def f():
            self.p(f"v_mov_b32 v{vVAL}, {val}")
            self.p.wait_tags(vm_tags=tags)
            self.p(f"buffer_store_dword v{vVAL}, v{voff}, s[{S_WS}:{S_WS+3}], s{soff} offen sc1")
        return f

    def phase1(self):
        p, o = self.p, self.o
        self.new_slots()
        first = {}
        def reads(c, j):
            k = (4 * c + j) & 1
            if c < 7:
                fb = FB + 12 * k; bx = self.pos[f"X{c}"]; bb = self.pos[f"B{c}"]
                L = []
                if j == 0: L.append(f"v_add_u32 v{self.vGW}, s{sCX+c}, v{self.vGW0}")
                x0, x1 = self.XR(c, j, 0), self.XR(c, j, 1)
                L += [("ds", f"ds_read_b128 a[{x0}:{x0+3}]", self.vXA[j], bx), ("ds", f"ds_read_b128 v[{fb}:{fb+3}]", self.vBJ[j], bb),
                      ("ds", f"ds_read_b128 v[{fb+4}:{fb+7}]", self.vBJ[j], bb + 4096), ("ds", f"ds_read_b128 v[{fb+8}:{fb+11}]", self.vGW, 32 * j),
                      ("ds", f"ds_read_b128 a[{x1}:{x1+3}]", self.vXB[j], bx)]
                return L
            fb = FB + 12 * k; b = self.pos[f"W{c-7}"]
            return [("ds", f"ds_read_b64_tr_b16 v[{fb+4*t+2*rd}:{fb+4*t+2*rd+1}]", vWT[t], b + j * 2048 + rd * 512) for t in range(2) for rd in range(2)]
        def barrier(c):
            tags = [it for it, u in self.use.items() if u == c] + (["GW"] if c == 0 else [])
            def f():
                p.wait_tags(vm_tags=tags, lg_all=True); p("s_barrier")
            return f
        ZA = ACB
        for c in range(21):
            for j in range(4):
                k = (4 * c + j) & 1; fb = FB + 12 * k
                pre = [barrier(c + 1)] if j == 3 else []
                if o["stamps"] and j == 0 and c in (0, 1, 7, 14): pre = pre + [self.stamp]
                if c < 7:
                    x0 = self.XR(c, j, 0); z = (c == 0 and j == 0)
                    ms = [f"v_mfma_f32_32x32x16_bf16 v[{ACS}:{ACS+15}], a[{x0}:{x0+3}], v[{fb}:{fb+3}], " + ("0" if z else f"v[{ACS}:{ACS+15}]"),
                          f"v_mfma_f32_32x32x16_bf16 v[{ACS+16}:{ACS+31}], a[{x0}:{x0+3}], v[{fb+4}:{fb+7}], " + ("0" if z else f"v[{ACS+16}:{ACS+31}]"),
                          f"v_mfma_f32_32x32x16_bf16 v[{ZA}:{ZA+15}], v[{fb+8}:{fb+11}], a[{x0}:{x0+3}], " + ("0" if z else f"v[{ZA}:{ZA+15}]")]
                else:
                    acc = ACA if c < 14 else ACB; pos = (c - 7) % 7; z = (pos == 0 and j == 0); ms = []
                    for t in range(2):
                        for lt in range(2):
                            a = acc + 32 * t + 16 * lt; x = self.XR(pos, j, lt)
                            ms.append(f"v_mfma_f32_32x32x16_bf16 v[{a}:{a+15}], v[{fb+4*t}:{fb+4*t+3}], a[{x}:{x+3}], " + ("0" if z else f"v[{a}:{a+15}]"))
                for m, t in enumerate(ms):
                    s = self.add_slot(t, pre if m == 0 else None)
                    if m == 0: first[(c, j)] = s
                nc, nj = (c, j + 1) if j < 3 else (c + 1, 0)
                if nc < 21:
                    R = reads(nc, nj); s0 = first[(c, j)]
                    h = (len(R) + 1) // 2
                    self.slots[s0]["post"] += R[:h]; self.slots[s0 + 1]["post"] += R[h:]
        nslot = len(self.slots)
        beta = lambda c: first[(c - 1, 3)] if c > 0 else 0
        wend = lambda c: beta(c + 1) if c < 21 else nslot
        self.beta = beta
        self.slots[0]["pre"] = [barrier(0)] + reads(0, 0) + self.slots[0]["pre"]
        for w in sorted(self.issue):
            if w < 0: continue
            L = []
            for it in self.issue[w]: L += self.dma_item(it)
            self.spread(beta(w), wend(w), L)
        for j, w in enumerate(self.move):
            if w <= 20: self.spread(beta(w) + 2, wend(w) - 3, self.move_item(j))
        self.spread(0, beta(5), self.setup_fillers())
        vl, vrow, vc8, vq, vt, vu = self.tl
        U = lambda i: ACS + i
        V = lambda i: ACS + 16 + i
        t0 = TMP
        G = [f"v_cvt_pk_bf16_f32 v{t0}, v{ZA}, v{ZA}", f"v_lshlrev_b32 v{t0}, 16, v{t0}", f"v_mul_f32 v{t0}, 0xbfb8aa3b, v{t0}",
             f"v_exp_f32 v{t0}, v{t0}", f"v_add_f32 v{t0}, 1.0, v{t0}", f"v_rcp_f32 v{t0}, v{t0}",
             f"v_cvt_pk_bf16_f32 v{t0}, v{t0}, v{t0}", f"v_lshlrev_b32 v{t0}, 16, v{t0}", f"v_sub_f32 v{t0+1}, 1.0, v{t0}",
             f"v_cvt_pk_bf16_f32 v{t0+1}, v{t0+1}, v{t0+1}", f"v_lshlrev_b32 v{vOM[0]}, 16, v{t0+1}",
             ("dsw", "ds_write_b32", vGA, f"v{t0}", L_G), ("dsw", "ds_write_b32", vGA, f"v{vOM[0]}", L_G + 512)]
        H1 = []; cur = (U(0), V(0)); pp = [(t0 + 2, t0 + 3), (t0 + 4, t0 + 5)]
        for i in range(1, 16):
            d = pp[i & 1]
            H1 += [f"v_fma_f32 v{d[0]}, v{vLR}, v{cur[0]}, v{U(i)}", f"v_fma_f32 v{d[1]}, v{vLR}, v{cur[1]}, v{V(i)}",
                   f"v_fmac_f32 v{d[0]}, v{vNLI}, v{cur[1]}", f"v_fmac_f32 v{d[1]}, v{vLI}, v{cur[0]}"]
            cur = d
        Eo = cur
        H1.append(("dsw", "ds_write_b64", vE, f"v[{Eo[0]}:{Eo[1]}]", L_E + 7 * 256))
        a0 = first[(7, 0)]
        self.spread(a0 + 1, beta(9) - 2, H1 + G)
        self.slots[beta(8)]["fill"].append(f"v_mov_b32 v{vVAL}, 0")
        self.slots[beta(8)]["fill"].append(f"global_load_dword v{vPOLL}, v{vVAL}, s[{sDBG}:{sDBG+1}] sc1")
        eb = ACB + 32
        P = [("ds", f"ds_read_b64 v[{eb+2*e}:{eb+2*e+1}]", vE, L_E + 256 * e) for e in range(7)]
        P.append(f"v_xor_b32 v{t0}, 128, v{vGA}")
        P.append(f"ds_read_b32 v{vOM[1]}, v{t0} offset:512")
        cur = (eb, eb + 1)
        for e in range(1, 7):
            d = (eb + 2 * e, eb + 2 * e + 1) if e < 6 else (vPR, vPI)
            P += self.cfma(d[0], d[1], vMR, vMI, cur[0], cur[1], eb + 2 * e, eb + 2 * e + 1); cur = d
        P += self.cfma(Eo[0], Eo[1], vMR, vMI, vPR, vPI, Eo[0], Eo[1])
        P.append(f"s_lshl_b32 s{sTMP[2]}, s{sR}, 8")
        P.append(Ins(f"buffer_store_dwordx2 v[{Eo[0]}:{Eo[1]}], v{self.vSst}, s[{S_AUX}:{S_AUX+3}], s{sTMP[2]} offen sc1", "SST"))
        self.spread(beta(9), beta(10) - 2, P)
        def gate_check():
            k = self.nlab; self.nlab += 1
            p(f"v_cmp_ne_u32 vcc, 0, v{vPOLL}"); p("s_cmp_lg_u64 vcc, 0"); p(f"s_cbranch_scc1 L_ok{k}")
            p(f"s_mov_b32 s{sSPIN}, 0"); p.label(f"L_spin{k}")
            p.raw(f"global_load_dword v{vPOLL}, v{vVAL}, s[{sDBG}:{sDBG+1}] sc1")
            p.raw(f"s_add_u32 s{sSPIN}, s{sSPIN}, 1"); p.raw(f"s_cmp_ge_u32 s{sSPIN}, {o['spin']}"); p.raw(f"s_cbranch_scc1 L_giveup{k}")
            p.raw("s_waitcnt vmcnt(0)"); p.raw(f"v_cmp_ne_u32 vcc, 0, v{vPOLL}"); p.raw("s_cmp_lg_u64 vcc, 0"); p.raw(f"s_cbranch_scc0 L_spin{k}")
            p.label(f"L_giveup{k}"); p.raw("s_waitcnt vmcnt(0)"); p.label(f"L_ok{k}")
        self.slots[beta(10)]["fill"].append(gate_check)
        KM = []
        for i in range(16):
            tt = t0 + (i & 1)
            KM += [f"v_mul_f32 v{tt}, v{vKI}, v{U(i)}", f"v_mul_f32 v{U(i)}, v{vKR}, v{U(i)}",
                   f"v_fmac_f32 v{U(i)}, v{vNKI}, v{V(i)}", f"v_fma_f32 v{V(i)}, v{vKR}, v{V(i)}, v{tt}"]
        self.spread(beta(10) + 1, beta(13), KM)
        wfs, wpoll = o.get("w_fs", 12), o.get("w_fspoll", 14)
        def fs_flag():
            p(f"s_lshl_b32 s{sTMP[2]}, s{sR}, 2"); p(f"s_add_u32 s{sTMP[2]}, s{sTMP[2]}, s{sFS}")
            self.flag(1, self.vFSo, sTMP[2], ["SST"])()
        self.slots[beta(wfs) - 6]["fill"].append(fs_flag)
        self.slots[beta(wpoll) - 8]["fill"].append(self.poll_issue(self.vL4, f"s{sFS}"))
        sb = TMP + 8
        SL = [lambda: [p(x) for x in (f"s_lshl_b32 s{sMASK}, 1, s{sR}", f"s_sub_u32 s{sMASK}, s{sMASK}, 1", f"s_mov_b32 s{sMASK+1}, 0")],
              self.poll_check(self.vL4, f"s{sFS}", 1)]
        for e in range(8):
            SL.append(f"buffer_load_dwordx2 v[{sb+2*e}:{sb+2*e+1}], v{self.vSld}, s[{S_AUX}:{S_AUX+3}], 0 offen sc1")
            if e < 7: SL.append(f"v_add_u32 v{self.vSld}, 0x100, v{self.vSld}")
        self.spread(beta(wpoll) + 4, beta(wpoll) + 12, SL)
        b0 = first[(14, 0)]
        EA = self.mlp_epilogue(ACA, 0) + [f"s_add_u32 s{sH0}, s{sH0}, 4096", f"s_add_u32 s{sH1}, s{sH1}, 4096"]
        self.spread(b0 + 2, beta(16), EA)
        def fh_addr():
            p(f"s_lshl_b32 s{sTMP[2]}, s{sS}, 2"); p(f"s_add_u32 s{sTMP[2]}, s{sTMP[2]}, s{sW}"); p(f"s_lshl_b32 s{sTMP[2]}, s{sTMP[2]}, 2")
            p(f"s_add_u32 s{sFP}, s{sFH}, s{sTMP[2]}")
        self.slots[beta(16)]["fill"].append(fh_addr)
        self.slots[beta(o.get("w_fa", 18)) - 6]["fill"].append(self.flag(1, vFLAG, sFP, ["H0"]))
        gb = ACA
        C2 = [f"v_and_b32 v{t0}, 32, v{self.vL4}", f"v_lshrrev_b32 v{t0}, 7, v{self.vL4}", f"v_lshlrev_b32 v{t0}, 6, v{t0}",
              f"s_lshl_b32 s{sTMP[2]}, s{sT0}, 7", f"s_add_u32 s{sTMP[2]}, s{sTMP[2]}, {L_G}", f"v_add_u32 v{t0}, s{sTMP[2]}, v{t0}"][1:]
        C2 += [f"ds_read_b128 v[{gb+4*e}:{gb+4*e+3}], v{t0} offset:{16*e}" for e in range(4)]
        cur = (sb, sb + 1)
        for e in range(1, 8):
            d = (sb + 2 * e, sb + 2 * e + 1)
            C2 += self.cfma(d[0], d[1], vNR, vNI, cur[0], cur[1], d[0], d[1]); cur = d
        C2 += [f"v_mov_b32 v{sb}, v{cur[0]}", f"v_mov_b32 v{sb+1}, v{cur[1]}",
               f"v_permlane32_swap_b32 v{cur[0]}, v{sb}", f"v_permlane32_swap_b32 v{cur[1]}, v{sb+1}"]
        C2 += self.cfma(cur[0], cur[1], vN8R, vN8I, sb, sb + 1, cur[0], cur[1])
        C2 += self.cfma(vPR, vPI, vJR, vJI, cur[0], cur[1], vPR, vPI)
        C2 += self.cmul(sb, sb + 1, vKR, vKI, vPR, vPI)
        cur = (sb, sb + 1)
        for i in range(16):
            C2 += [f"v_fmac_f32 v{U(i)}, v{vLR}, v{cur[0]}", f"v_fmac_f32 v{V(i)}, v{vLR}, v{cur[1]}",
                   f"v_fmac_f32 v{U(i)}, v{vNLI}, v{cur[1]}", f"v_fmac_f32 v{V(i)}, v{vLI}, v{cur[0]}"]
            cur = (U(i), V(i))
        pk = ACA + 16; fr = ACA + 32; tb = self.pos["TB"]
        for i in range(16): C2 += [f"v_mul_f32 v{U(i)}, v{gb+i}, v{U(i)}", f"v_mul_f32 v{V(i)}, v{gb+i}, v{V(i)}"]
        for i in range(8): C2.append(f"v_cvt_pk_bf16_f32 v{pk+i}, v{U(2*i)}, v{U(2*i+1)}")
        C2 += [("dsw", "ds_write_b128", self.vTW, f"v[{pk}:{pk+3}]", tb), ("dsw", "ds_write_b128", self.vTW, f"v[{pk+4}:{pk+7}]", tb + 16)]
        for i in range(8): C2.append(f"v_cvt_pk_bf16_f32 v{pk+8+i}, -v{V(2*i)}, -v{V(2*i+1)}")
        C2 += [("dsw", "ds_write_b128", self.vTW, f"v[{pk+8}:{pk+11}]", tb + 2048), ("dsw", "ds_write_b128", self.vTW, f"v[{pk+12}:{pk+15}]", tb + 2064)]
        for cpt in range(2):
            for q in range(2):
                for rd in range(2):
                    r = fr + 8 * cpt + 4 * q + 2 * rd
                    C2.append(("ds", f"ds_read_b64_tr_b16 v[{r}:{r+1}]", self.vTR, tb + cpt * 2048 + q * 1024 + rd * 256))
        C3 = []
        for cpt in range(2):
            for q in range(2):
                r = fr + 8 * cpt + 4 * q
                C3.append(Ins(f"buffer_store_dwordx4 v[{r}:{r+3}], v{vLANE16}, s[{S_WS}:{S_WS+3}], s{sHS} offen" + (" offset:1024" if q else "") + " sc1", "HS"))
            if cpt == 0: C3.append(f"s_add_u32 s{sHS}, s{sHS}, {28*1024}")
        w2a, w2b = o.get("w_scan", (16, 20))
        self.spread(beta(w2a) + 1, beta(w2b) - 4, C2)
        self.spread(beta(w2b) - 2, beta(w2b) + 2, C3)
        self.nslot1 = nslot

    def phase2(self):
        p, o = self.p, self.o
        RING = o["ring"]; ra = 144
        sJA, sJB, sJS = sCX, sCW, sJ
        vH = [5, 6, 7, 8]
        ACC = [64, 96, 128, 192]
        order = [("A", tp) for tp in range(4)] + [("S", 0), ("S", 1), ("B", 0), ("B", 1), ("S", 2), ("B", 2), ("S", 3), ("B", 3)]
        steps = [(part, tp, j) for (part, tp) in order for j in range(7)]
        T2 = sTMP[2]
        su = []
        for j in range(7):
            su += [f"s_lshl_b32 s{sJA+j}, s{sJ+j}, 13", f"s_add_u32 s{sJB+j}, s{sJA+j}, 4096"]
        su += [f"s_mul_i32 s{T2}, s{sKH}, {-28*1024 & 0xffffffff:#x}", f"s_add_u32 s{T2}, s{T2}, {112*1024}"]
        for j in range(7): su += [f"s_lshl_b32 s{sJS+j}, s{sJ+j}, 12", f"s_add_u32 s{sJS+j}, s{sJS+j}, s{T2}"]
        for tp in range(4):
            su += [f"s_lshl_b32 s{T2}, s{sKH}, 1", f"s_add_u32 s{T2}, s{T2}, {2+tp}", f"s_and_b32 s{T2}, s{T2}, 3",
                   f"s_lshl2_add_u32 s{T2}, s{sR}, s{T2}", f"s_mul_i32 s{T2}, s{T2}, {168*1024}", f"s_add_u32 s{T2}, s{T2}, s{sM1}",
                   f"v_add_u32 v{vH[tp]}, s{T2}, v{vLANE16}", f"s_mul_i32 s{T2}, s{sKH}, {56*1024}", f"v_add_u32 v{vH[tp]}, s{T2}, v{vH[tp]}"]
        lastdma = max(w for w in self.issue)
        assert lastdma <= 18
        self.spread(self.beta(19), self.beta(20), su)
        def hload(k):
            part, tp, j = steps[k]; r = ra + 4 * (k % RING)
            so = {"A": sJA, "B": sJB, "S": sJS}[part] + j
            return f"buffer_load_dwordx4 a[{r}:{r+3}], v{vH[tp]}, s[{S_WS}:{S_WS+3}], s{so} offen sc1"
        def maskhalf():
            p(f"s_mul_i32 s{T2}, s{sKH}, 28"); p(f"s_lshl_b64 s[{sMASK}:{sMASK+1}], 0xfffffff, s{T2}")
        def maskall():
            p(f"s_mov_b32 s{sMASK}, -1"); p(f"s_mov_b32 s{sMASK+1}, 0xffffff")
        n1 = self.nslot1
        self.slots[self.beta(20)]["fill"].append(self.poll_issue(self.vL4, f"s{sFH}"))
        early = o.get("early", 8)
        E = [maskhalf, self.poll_check(self.vL4, f"s{sFH}", 1)] + [hload(k) for k in range(early)]
        self.spread(n1 - 8, n1, E)
        EB = self.mlp_epilogue(ACB, 1)
        s = self.add_slot(None, ([self.stamp] if o["stamps"] else []) + EB + [self.flag(2, vFLAG, sFP, ["HS"])] + [hload(k) for k in range(early, RING)] + ([self.stamp] if o["stamps"] else []))
        first = {}
        started = set()
        for k, (part, tp, j) in enumerate(steps):
            r = ra + 4 * (k % RING); wa = self.W2A[j] + {"A": 0, "B": 8, "S": 16}[part]
            for dt in range(2):
                a = ACC[tp] + 16 * dt
                c = f"v[{a}:{a+15}]" if (tp, dt) in started else "0"
                started.add((tp, dt))
                s = self.add_slot(f"v_mfma_f32_32x32x16_bf16 v[{a}:{a+15}], a[{wa+4*dt}:{wa+4*dt+3}], a[{r}:{r+3}], {c}")
                if dt == 0: first[k] = s
            if k + RING < len(steps): self.slots[s]["post"].append(hload(k + RING))
        nst = len(steps)
        last = {tp: max(k for k, st in enumerate(steps) if st[1] == tp) for tp in range(4)}
        self.slots[first[o.get("k_fb", 8)]]["fill"].append(self.flag(3, vFLAG, sFP, ["H1"]))
        for (k0, val, mask) in ((28, 2, maskall), (42, 3, maskhalf)):
            kc = k0 - RING
            self.slots[first[kc - o.get("poll_lead", 5)]]["fill"].append(self.poll_issue(self.vL4, f"s{sFH}"))
            self.slots[first[kc]]["fill"] += [mask, self.poll_check(self.vL4, f"s{sFH}", val)]
        vRW = [26, 27, 28, 29]; vRR = 30; vO = 31; vXo = 32; vPo = 33; SK = TMP; t = 40
        ln = self.vL4
        su = [f"v_lshrrev_b32 v{t}, 2, v{ln}",
              f"v_and_b32 v{t+1}, 7, v{t}", f"v_lshrrev_b32 v{t+2}, 5, v{t}", f"v_xor_b32 v{t+1}, v{t+1}, v{t+2}", f"v_lshlrev_b32 v{t+1}, 4, v{t+1}",
              f"v_subrev_u32 v{t+2}, {L_G}, v{vGA}", f"v_and_b32 v{t+2}, 0x7f, v{t+2}",
              f"v_lshl_add_u32 v{t+1}, v{t+2}, 6, v{t+1}", f"s_lshl_b32 s{T2}, s{sW}, 13", f"v_add_u32 v{vRW[0]}, s{T2}, v{t+1}"]
        su += [f"v_xor_b32 v{vRW[a]}, {32*a}, v{vRW[0]}" for a in range(1, 4)]
        su += [f"v_lshrrev_b32 v{t+1}, 4, v{t}", f"v_and_b32 v{t+2}, 15, v{t}",
               f"s_and_b32 s{T2}, s{sW}, 2", f"s_lshl_b32 s{T2}, s{T2}, 1", f"v_xor_b32 v{t+3}, v{t+2}, v{t+1}", f"v_xor_b32 v{t+3}, s{T2}, v{t+3}",
               f"v_lshlrev_b32 v{t+3}, 4, v{t+3}", f"v_lshl_add_u32 v{t+3}, v{t+1}, 8, v{t+3}", f"v_add_u32 v{vRR}, s{sM2}, v{t+3}",
               f"s_lshl_b32 s{T2}, s{sKH}, 3", f"s_add_u32 s{T2}, s{T2}, s{sW}", f"s_lshl_b32 s{T2}, s{T2}, 3", f"v_add_u32 v{t+1}, s{T2}, v{t+1}",
               f"v_lshlrev_b32 v{t+4}, 2, v{t+1}", f"v_add_u32 v{t+4}, {L_G}, v{t+4}",
               f"s_lshl_b32 s{T2}, s{sR}, 7", f"v_add_u32 v{t+1}, s{T2}, v{t+1}", f"v_mul_u32_u24 v{t+1}, 896, v{t+1}",
               f"s_lshl_b32 s{T2}, s{sN}, 7", f"v_lshl_add_u32 v{t+2}, v{t+2}, 3, s{T2}",
               f"v_add_u32 v{vXo}, v{t+1}, v{t+2}", f"v_lshlrev_b32 v{vO}, 1, v{vXo}",
               f"global_load_dwordx2 v[{t+6}:{t+7}], v{t+2}, s[{sDSK}:{sDSK+1}]"]
        for e in range(4):
            off = (32 * (e >> 1) + 4 * (e & 1))
            su += [f"s_mov_b32 s{T2}, {off*896}", f"buffer_load_dwordx2 v[{t+8+2*e}:{t+9+2*e}], v{vXo}, s[{S_X}:{S_X+3}], s{T2} offen",
                   f"ds_read_b32 v{t+16+e}, v{t+4} offset:{4*off}"]
        su += [f"s_mul_i32 s{sPs}, s{sR}, 14", f"s_add_u32 s{sPr}, s{sPs}, s{sN}", f"s_add_u32 s{sPs}, s{sPs}, s{sS}",
               f"s_mul_i32 s{T2}, s{sKH}, -7", f"s_add_u32 s{T2}, s{T2}, 7", f"s_add_u32 s{sPr}, s{sPr}, s{T2}",
               f"s_lshl_b32 s{sPs}, s{sPs}, 14", f"s_lshl_b32 s{sPr}, s{sPr}, 14",
               f"s_add_u32 s{sPs}, s{sPs}, {WS_PART}", f"s_add_u32 s{sPr}, s{sPr}, {WS_PART}",
               f"v_add_u32 v{vPo}, s{sM2}, v{vLANE16}",
               f"s_add_u32 s{T2}, s{T2}, s{sN}", f"s_lshl_b32 s{T2}, s{T2}, 2", f"s_add_u32 s{T2}, s{T2}, s{sW}", f"s_lshl_b32 s{T2}, s{T2}, 2",
               f"s_add_u32 s{sFPr}, s{sFH}, s{T2}", f"s_add_u32 s{sFPr}, s{sFPr}, 4096"]
        for r_ in vRW + [vRR]: self.base[r_] = 0
        self.spread(first[0], first[10], su)
        sk = [f"v_lshlrev_b32 v{t}, 16, v{t+6}", f"v_and_b32 v{t+1}, 0xffff0000, v{t+6}", f"v_lshlrev_b32 v{t+2}, 16, v{t+7}", f"v_and_b32 v{t+3}, 0xffff0000, v{t+7}"]
        for e in range(4):
            x = t + 8 + 2 * e; d = SK + 4 * e
            sk += [f"v_lshlrev_b32 v{d}, 16, v{x}", f"v_and_b32 v{d+1}, 0xffff0000, v{x}", f"v_lshlrev_b32 v{d+2}, 16, v{x+1}", f"v_and_b32 v{d+3}, 0xffff0000, v{x+1}"]
            sk += [f"v_mul_f32 v{d+i}, v{d+i}, v{t+i}" for i in range(4)]
            sk += [f"v_cvt_pk_bf16_f32 v{x}, v{d}, v{d+1}", f"v_cvt_pk_bf16_f32 v{x+1}, v{d+2}, v{d+3}"]
            sk += [f"v_lshlrev_b32 v{d}, 16, v{x}", f"v_and_b32 v{d+1}, 0xffff0000, v{x}", f"v_lshlrev_b32 v{d+2}, 16, v{x+1}", f"v_and_b32 v{d+3}, 0xffff0000, v{x+1}"]
            sk += [f"v_mul_f32 v{d+i}, v{d+i}, v{t+16+e}" for i in range(4)]
        self.spread(first[28], first[42], sk)
        RD = 160
        PT = TMP + 16
        PTs = [TMP + 16, 40]
        def red_write(tp):
            rb = self.pos[f"RB{tp&1}"]
            return [("dsw", "ds_write_b128", vRW[a], f"v[{ACC[tp]+16*dt+4*a}:{ACC[tp]+16*dt+4*a+3}]", rb + 128 * dt) for dt in range(2) for a in range(4)]
        def red_bar():
            p.wait_tags(lg_all=True); p("s_barrier")
        def red_read(tp):
            rb = self.pos[f"RB{tp&1}"]
            return [("ds", f"ds_read_b128 v[{RD+16*i+4*w}:{RD+16*i+4*w+3}]", vRR, rb + 8192 * w + 1024 * i) for i in range(2) for w in range(4)]
        def red_fin(tp):
            L = []
            for i in range(2):
                b = RD + 16 * i
                L += [f"v_add_f32 v{b+e}, v{b+e}, v{b+4+e}" for e in range(4)] + [f"v_add_f32 v{b+8+e}, v{b+8+e}, v{b+12+e}" for e in range(4)]
                L += [f"v_add_f32 v{b+e}, v{b+e}, v{b+8+e}" for e in range(4)]
                if tp < 2:
                    if tp == 1 and i == 0: L.append(f"s_add_u32 s{sPs}, s{sPs}, 8192")
                    L.append(Ins(f"buffer_store_dwordx4 v[{b}:{b+3}], v{vPo}, s[{S_WS}:{S_WS+3}], s{sPs} offen" + (" offset:1024" if i else "") + " sc1", "PS"))
                else:
                    L += [f"v_add_f32 v{SK+8*(tp-2)+4*i+e}, v{b+e}, v{SK+8*(tp-2)+4*i+e}" for e in range(4)]
            return L
        def out_store(tp):
            L = []
            for i in range(2):
                d = SK + 8 * (tp - 2) + 4 * i
                L += [f"v_add_f32 v{d+e}, v{d+e}, v{PTs[tp-2]+4*i+e}" for e in range(4)]
                L += [f"s_mov_b32 s{T2}, {(32*(tp-2) + 4*i)*1792}",
                      f"buffer_store_dwordx4 v[{d}:{d+3}], v{vO}, s[{S_OUT}:{S_OUT+3}], s{T2} offen {o['out_flags']}".rstrip()]
            return L
        for tp in range(3):
            k = last[tp] + 1
            self.spread(first[k] + 1, first[k + 2] + 1, red_write(tp))
            self.slots[first[k + 3]]["fill"] += [red_bar] + red_read(tp)
            self.spread(first[k + 4], first[k + 6] + 1, red_fin(tp))
        kf = last[1] + 1 + o.get("k_fp", 16)
        self.slots[first[kf]]["fill"] += [f"s_add_u32 s{sFP}, s{sFP}, 4096", self.flag(1, vFLAG, sFP, ["PS"])]
        self.slots[first[nst - 3]]["fill"].append(self.poll_issue(vFLAG, f"s{sFPr}"))
        def one(): p(f"s_mov_b64 s[{sMASK}:{sMASK+1}], 1")
        PL = [one, self.poll_check(vFLAG, f"s{sFPr}", 1)]
        for e in range(4):
            d = PTs[e >> 1] + 4 * (e & 1)
            if e == 2: PL.append(f"s_add_u32 s{sPr}, s{sPr}, 8192")
            PL.append(f"buffer_load_dwordx4 v[{d}:{d+3}], v{vPo}, s[{S_WS}:{S_WS+3}], s{sPr} offen" + (" offset:1024" if e & 1 else "") + " sc1")
        tail = ([self.stamp] if o["stamps"] else []) + red_write(3) + PL + [red_bar] + red_read(3) + red_fin(3) + out_store(2) + out_store(3)
        self.add_slot(None, tail)

    def finish(self):
        p, o = self.p, self.o
        if o["stamps"]:
            self.stamp()
            p.wait_tags(vm_all=True); self.stamp()
            p(f"v_readlane_b32 s{sTMP[0]}, v0, 63"); p(f"s_lshl_b32 s{sTMP[0]}, s{sTMP[0]}, 2"); p(f"s_add_u32 s{sTMP[0]}, s{sTMP[0]}, s{sW}")
            p(f"s_lshl_b32 s{sTMP[0]}, s{sTMP[0]}, 8"); p(f"s_add_u32 s{sTMP[0]}, s{sTMP[0]}, {WS_STAMP}")
            p(f"buffer_store_dword v0, v{self.vL4}, s[{S_WS}:{S_WS+3}], s{sTMP[0]} offen")
        p("s_endpgm")

    def helper(self):
        p, o = self.p, self.o
        p.drained(); p.smem = set()
        K = lambda i: sKA + 2 * i
        p.label("L_helper")
        p(f"s_lshl_b32 s3, s3, 2"); p(f"s_add_u32 s3, s3, s{sTMP[0]}")
        p.wait_smem()
        self.srd(S_WS, K(16), WS_SIZE)
        p("s_cmp_lg_u32 s3, 0"); p("s_cbranch_scc1 L_noinit")
        for i in range(4): p(f"v_mov_b32 v{4+i}, 0")
        p("v_lshlrev_b32 v1, 4, v0")
        for i in range(3):
            p(f"s_mov_b32 s{sTMP[1]}, {WS_FL + 4096*i}")
            p(f"buffer_store_dwordx4 v[4:7], v1, s[{S_WS}:{S_WS+3}], s{sTMP[1]} offen sc1")
        p.raw("s_waitcnt vmcnt(0)"); p.drained()
        p("s_barrier")
        p("v_mov_b32 v5, 1")
        p("v_cmp_eq_u32 vcc, 0, v0"); p("s_and_saveexec_b64 s[50:51], vcc"); p("s_cbranch_execz L_nosig")
        p(f"global_store_dword v4, v5, s[{K(15)}:{K(15)+1}] sc1")
        p.label("L_nosig")
        p("s_mov_b64 exec, s[50:51]")
        p.label("L_noinit")
        if o["prefetch"]:
            p("s_getpc_b64 s[50:51]")
            p.label("L_pc")
            p(f"s_sub_u32 s50, s50, L_pc-{KN}_kernel"); p("s_subb_u32 s51, s51, 0")
            p("v_lshlrev_b32 v1, 7, v0"); p(f"v_min_u32 v2, L_pc-{KN}_kernel, v1")
            p("global_load_dword v8, v2, s[50:51]")
            self.srd(S_WG, K(10), 448 * 3584); self.srd(S_WU, K(11), 448 * 3584); self.srd(S_WD, K(12), 1792 * 896)
            self.srd(S_BRE, K(5), 448 * 896); self.srd(S_BIM, K(6), 448 * 896)
            p("v_cmp_gt_u32 vcc, 196, v0"); p("v_bfrev_b32 v3, 1")
            p("v_lshlrev_b32 v2, 8, v0"); p("v_cndmask_b32 v2, v3, v2, vcc")
            p("v_cndmask_b32 v1, v3, v1, vcc")
            p(f"s_mul_i32 s{sTMP[1]}, s3, {14*3584}")
            p(f"buffer_load_dword v9, v2, s[{S_WG}:{S_WG+3}], s{sTMP[1]} offen")
            p(f"buffer_load_dword v10, v2, s[{S_WU}:{S_WU+3}], s{sTMP[1]} offen")
            p(f"buffer_load_dword v11, v2, s[{S_WG}:{S_WG+3}], s{sTMP[1]} offen offset:128")
            p(f"buffer_load_dword v12, v2, s[{S_WU}:{S_WU+3}], s{sTMP[1]} offen offset:128")
            p(f"buffer_load_dword v13, v2, s[{S_WD}:{S_WD+3}], s{sTMP[1]} offen")
            p(f"buffer_load_dword v14, v2, s[{S_WD}:{S_WD+3}], s{sTMP[1]} offen offset:128")
            p(f"s_and_b32 s{sTMP[2]}, s3, 15"); p(f"s_mul_i32 s{sTMP[2]}, s{sTMP[2]}, {196*128}")
            p("s_cmp_lt_u32 s3, 16"); p("s_cbranch_scc1 L_cre")
            p(f"buffer_load_dword v15, v1, s[{S_BIM}:{S_BIM+3}], s{sTMP[2]} offen")
            p("s_branch L_cdone")
            p.label("L_cre")
            p(f"buffer_load_dword v16, v1, s[{S_BRE}:{S_BRE+3}], s{sTMP[2]} offen")
            p.label("L_cdone")
            p.raw("s_waitcnt vmcnt(0)")
        p.label("L_end")
        p("s_endpgm")

    def build(self):
        self.plan()
        self.prologue()
        self.phase1()
        self.phase2()
        self.run_slots()
        self.finish()
        self.helper()
        ins, added = pad_hazards(self.p.out)
        body = "\n".join(("" if i.kind == "label" else "    ") + i.text for i in ins)
        txt = HEADER + f"; @launch grid=(256,1,1) block=(256,1,1) lds={LDS_BYTES}\n"
        txt += '.amdgcn_target "amdgcn-amd-amdhsa--gfx950"\n.text\n'
        txt += f".globl {KN}_kernel\n.p2align 8\n.type {KN}_kernel,@function\n{KN}_kernel:\n" + body + "\n"
        txt += f""".section .rodata,"a"
.p2align 6
.amdhsa_kernel {KN}_kernel
  .amdhsa_next_free_vgpr 512
  .amdhsa_next_free_sgpr 102
  .amdhsa_accum_offset 256
  .amdhsa_group_segment_fixed_size 0
  .amdhsa_kernarg_size 136
  .amdhsa_user_sgpr_count 2
  .amdhsa_user_sgpr_kernarg_segment_ptr 1
  .amdhsa_system_sgpr_workgroup_id_x 1
  .amdhsa_float_denorm_mode_32 3
.end_amdhsa_kernel
"""
        self.stats = dict(n=len(ins), nops=added, waits=self.p.nwait)
        return txt

if __name__ == "__main__":
    out = sys.argv[1] if len(sys.argv) > 1 else "k.s"
    opts = json.loads(sys.argv[2]) if len(sys.argv) > 2 else {}
    g = Gen(**opts)
    open(out, "w").write(g.build())
    print(out, g.stats, {k: v // UNIT for k, v in g.pos.items()})
```

```python
import sys, json
from asmlib import Prog, Ins, pad_hazards

KN = "gated_mix__ssm_conv_s5__glu_gated_bilinear__prompt"
HEADER = open("cdna_kernels/%s.s.ref" % KN).read().split("; Override launch geometry")[0]

WS_H = 0
WS_PART = 12 << 20
WS_S = 16 << 20
WS_FL = 17 << 20
WS_STAMP = 200 << 20
WS_SIZE = 268435456
OOB = 0x80000000

UNIT = 8192
NUNITS = 19
PERS = NUNITS * UNIT
L_G = PERS
L_GW = PERS + 1024
L_E = PERS + 2048
LDS_BYTES = 160 * 1024

S_X, S_BRE, S_BIM, S_WG, S_WU, S_WD, S_C, S_WS, S_OUT, S_AUX = 4, 8, 12, 16, 20, 24, 28, 32, 36, 40
sW, sR, sS, sN, sKH, sT0 = 44, 45, 46, 47, 48, 49
sM1, sM2, sM4 = 50, 51, 52
sTMP = [53, 54, 55]
sCX = 56
sCW = 63
sJ = 70
sH0, sH1, sHS, sFH, sFP, sFPr, sFS, sPs, sPr = 77, 78, 79, 80, 81, 82, 83, 84, 85
sDSK = 86
sDBG = 88
sSPIN = 90
sMASK = 92
sSTAMP = 94
sKA = 68

vLANE16 = 1; vFLAG = 2; vWT = [3, 4]; vWG = [5, 6]; vWU = [7, 8]
vLR, vLI, vNLI = 9, 10, 11
vKR, vKI, vNKI = 12, 13, 14
vMR, vMI = 15, 16
vNR, vNI = 17, 18
vN8R, vN8I = 19, 20
vJR, vJI = 21, 22
vE = 23
vOM = [24, 25]
vD = [26, 27, 28, 29]; vC = [30, 31]; vWD = [32, 33]; vCA = 34
vPR, vPI = 36, 37
vVAL = 35; vPOLL = 38; vGA = 39
FB = 40
ACS = 64; ACA = 96; ACB = 160; TMP = 224

def tau(n): return 16 * ((n >> 2) & 1) + 4 * (n >> 3) + (n & 3)

class Gen:
    def __init__(self, **o):
        self.o = dict(a1=1, c1=0, a2=0, c2=0, ring=16, stamps=False, out_flags="", prefetch=True, spin=1 << 16)
        self.o.update(o)
        self.p = Prog()
        self.base = {}
        self.nstamp = 0
        self.nlab = 0

    def lds(self, reg, off):
        b = self.base.get(reg, 0)
        if not (0 <= off - b <= 65535):
            nb = (off // 32768) * 32768
            d = nb - b
            self.p(f"v_add_u32 v{reg}, {d & 0xffffffff:#x}, v{reg}")
            self.base[reg] = b = nb
        return off - b
    def stamp(self):
        if not self.o["stamps"]: return
        k = self.nstamp; self.nstamp += 1
        p = self.p
        p.raw(f"s_memrealtime s[{sSTAMP}:{sSTAMP+1}]")
        p.raw("s_waitcnt lgkmcnt(0)"); p.lg = []
        p.raw(f"v_writelane_b32 v0, s{sSTAMP}, {k}")
    def cmul(self, dr, di, ar, ai, br, bi):
        return [f"v_mul_f32 v{dr}, v{ar}, v{br}", f"v_mul_f32 v{di}, v{ar}, v{bi}",
                f"v_fma_f32 v{dr}, -v{ai}, v{bi}, v{dr}", f"v_fmac_f32 v{di}, v{ai}, v{br}"]
    def cfma(self, dr, di, ar, ai, br, bi, cr, ci):
        return [f"v_fma_f32 v{dr}, v{ar}, v{br}, v{cr}", f"v_fma_f32 v{di}, v{ar}, v{bi}, v{ci}",
                f"v_fma_f32 v{dr}, -v{ai}, v{bi}, v{dr}", f"v_fmac_f32 v{di}, v{ai}, v{br}"]
    def csq(self, dr, di, ar, ai):
        return [f"v_mul_f32 v{dr}, v{ar}, v{ar}", f"v_mul_f32 v{di}, v{ar}, v{ai}",
                f"v_fma_f32 v{dr}, -v{ai}, v{ai}, v{dr}", f"v_add_f32 v{di}, v{di}, v{di}"]
    def srd(self, s, ptr, size):
        p = self.p
        p(f"s_mov_b32 s{s}, s{ptr}"); p(f"s_mov_b32 s{s+1}, s{ptr+1}")
        p(f"s_mov_b32 s{s+2}, {size:#x}"); p(f"s_mov_b32 s{s+3}, 0x20000")

    def poll_issue(self, voff, soff, srd=S_WS):
        return f"buffer_load_dword v{vPOLL}, v{voff}, s[{srd}:{srd+3}], {soff} offen sc1"
    def poll_check(self, voff, soff, minval, srd=S_WS):
        def f():
            p = self.p; k = self.nlab; self.nlab += 1
            p(f"v_cmp_le_u32 vcc, {minval}, v{vPOLL}")
            p(f"s_andn2_b64 vcc, s[{sMASK}:{sMASK+1}], vcc")
            p(f"s_cbranch_scc0 L_ok{k}")
            p(f"s_mov_b32 s{sSPIN}, 0")
            p.label(f"L_spin{k}")
            p.raw(self.poll_issue(voff, soff, srd))
            p.raw(f"s_add_u32 s{sSPIN}, s{sSPIN}, 1")
            p.raw(f"s_cmp_ge_u32 s{sSPIN}, {self.o['spin']}")
            p.raw(f"s_cbranch_scc1 L_giveup{k}")
            p.raw("s_waitcnt vmcnt(0)")
            p.raw(f"v_cmp_le_u32 vcc, {minval}, v{vPOLL}")
            p.raw(f"s_andn2_b64 vcc, s[{sMASK}:{sMASK+1}], vcc")
            p.raw(f"s_cbranch_scc1 L_spin{k}")
            p.label(f"L_giveup{k}")
            p.raw("s_waitcnt vmcnt(0)")
            if self.o["stamps"]: p.raw(f"v_writelane_b32 v0, s{sSPIN}, {52+k}")
            p.label(f"L_ok{k}")
        return f

    def plan(self):
        o = self.o
        issue = o.get("issue") or {
            -1: ["X0", "B0", "X1", "B1"], 0: ["X2", "B2"], 1: ["X3", "B3"], 2: ["X4", "B4"], 3: ["X5", "B5"], 4: ["X6", "B6"],
            5: ["W0"], 6: ["W1"], 7: ["W2", "W3"], 8: ["W4", "W5"], 9: ["W6", "D0"], 10: ["W7", "C0"], 11: ["W8", "C1"],
            12: ["W9", "D1"], 13: ["W10", "D2"], 14: ["W11", "C2", "C3"], 15: ["W12", "D3"], 16: ["W13", "D4"], 17: ["C4", "D5", "C5"], 18: ["D6", "C6"]}
        issue = {int(k): v for k, v in issue.items()}
        move = o.get("move") or [12, 15, 16, 17, 19, 19, 20]
        self.issue, self.move = issue, move
        size = {"X": 2, "B": 1, "W": 2, "D": 2, "C": 1}
        items = []
        for w in sorted(issue):
            for it in issue[w]:
                k, i = it[0], int(it[1:])
                use = i if k in "XB" else (7 + i if k == "W" else move[i])
                assert w < use, it
                items.append((w, use, size[k], it))
        items.append((o.get("tb0", 17), 20, 2, "TB"))
        items.append((21, 99, 4, "RB0")); items.append((21, 99, 4, "RB1"))
        items.sort(key=lambda t: t[0])
        self.use = {it: u for (_, u, _, it) in items}
        for w in range(-1, 22):
            occ = sum(sz for (w2, u2, sz, it) in items if w2 <= w <= u2)
            assert occ <= NUNITS, f"LDS over-subscribed in window {w}: {occ}"
        pos = {}
        dead = set()
        def place(k):
            if k == len(items): return True
            w, u, sz, it = items[k]
            live = tuple(sorted((pos[it2], sz2, u2) for (w2, u2, sz2, it2) in items[:k] if u2 >= w))
            if (k, live) in dead: return False
            busy = set()
            for (b, sz2, _) in live: busy |= set(range(b, b + sz2))
            cand = [b for b in range(0, NUNITS - sz + 1, 1 if sz == 1 else 2) if not (busy & set(range(b, b + sz)))]
            if sz == 1: cand.sort(key=lambda b: (0 if (b == NUNITS - 1 or (b ^ 1) in busy) else 1, -b))
            for b in cand[:3]:
                pos[it] = b
                if place(k + 1): return True
            dead.add((k, live))
            assert len(dead) < 200000, "LDS allocation search gave up"
            return False
        assert place(0), "LDS allocation failed"
        self.pos = {k: v * UNIT for k, v in pos.items()}

    def dma_item(self, it):
        k, i = it[0], int(it[1:]); b = self.pos[it]; L = []
        def ld(v, srd, so, imm):
            return Ins(f"buffer_load_dwordx4 v{v}, s[{srd}:{srd+3}], s{so} offen" + (f" offset:{imm}" if imm else "") + " lds", it)
        if k == "X":
            L.append(f"s_add_u32 m0, s{sM4}, {b}")
            for q in range(4): L.append(ld(self.vX[q], S_X, sCX + i, q * 1024))
        elif k == "B":
            L.append(f"s_add_u32 m0, s{sM1}, {b}"); L.append(ld(self.vB, S_BRE, sCX + i, 0))
            L.append(f"s_add_u32 m0, s{sM1}, {b + 4096}"); L.append(ld(self.vB, S_BIM, sCX + i, 0))
        elif k == "W":
            if i == 7:
                for v in vWG + vWU: L.append(f"v_add_u32 v{v}, 0x80, v{v}")
            L.append(f"s_add_u32 m0, s{sM2}, {b}")
            for q in range(2): L.append(ld(vWG[q], S_WG, sCW + i % 7, q * 1024))
            L.append(f"s_add_u32 m0, s{sM2}, {b + 8192}")
            for q in range(2): L.append(ld(vWU[q], S_WU, sCW + i % 7, q * 1024))
        elif k == "D":
            L.append(f"s_mul_i32 s{sTMP[0]}, s{sJ + i}, {128 * 896}")
            L.append(f"s_add_u32 m0, s{sM4}, {b}")
            for q in range(4): L.append(ld(vD[q], S_WD, sTMP[0], q * 1024))
        elif k == "C":
            L.append(f"s_lshl_b32 s{sTMP[1]}, s{sJ + i}, 7")
            L.append(f"s_add_u32 m0, s{sM2}, {b}")
            for q in range(2): L.append(ld(vC[q], S_C, sTMP[1], q * 1024))
        return L

    W2A = [224, 0, 24, 48, 72, 96, 120]
    def move_item(self, j):
        a = self.W2A[j]; bd = self.pos[f"D{j}"]; bc = self.pos[f"C{j}"]; L = []
        for kq in range(2):
            for dt in range(2):
                for rd in range(2):
                    r = a + 8 * kq + 4 * dt + 2 * rd
                    L.append(("ds", f"ds_read_b64_tr_b16 a[{r}:{r+1}]", vWD[dt], bd + kq * 2048 + rd * 1024))
        for dt in range(2):
            r = a + 16 + 4 * dt
            L.append(("ds", f"ds_read_b128 a[{r}:{r+3}]", vCA, bc + dt * 4096))
        return L

    def emit(self, x):
        p = self.p
        if callable(x): x()
        elif isinstance(x, tuple):
            if x[0] == "ds":
                off = self.lds(x[2], x[3]); p(f"{x[1]}, v{x[2]} offset:{off}")
            elif x[0] == "dsw":
                off = self.lds(x[2], x[4]); p(f"{x[1]} v{x[2]}, {x[3]} offset:{off}")
        else: p(x)

    def new_slots(self): self.slots = []
    def add_slot(self, mfma, pre=None):
        self.slots.append(dict(pre=list(pre or []), mfma=mfma, post=[], fill=[])); return len(self.slots) - 1
    def spread(self, a, b, items):
        n = len(items); m = b - a
        for k, it in enumerate(items): self.slots[a + (k * m) // n]["fill"].append(it)
    def run_slots(self):
        for s in self.slots:
            for x in s["pre"]: self.emit(x)
            if s["mfma"]: self.p(s["mfma"])
            for x in s["post"] + s["fill"]: self.emit(x)

    def prologue(self):
        p, o = self.p, self.o
        p(f"s_load_dwordx16 s[{sKA}:{sKA+15}], s[0:1], 0")
        p(f"s_load_dwordx16 s[{sKA+16}:{sKA+31}], s[0:1], 64")
        p(f"s_load_dwordx2 s[{sKA+32}:{sKA+33}], s[0:1], 128")
        if o["stamps"]: p.raw("s_memrealtime s[60:61]")
        p("s_cmp_ge_u32 s2, 256"); p("s_cbranch_scc1 L_end")
        p("v_lshrrev_b32 v1, 6, v0")
        p("s_and_b32 s3, s2, 7")
        p(f"v_readfirstlane_b32 s{sW}, v1")
        p(f"s_lshr_b32 s{sTMP[0]}, s2, 3")
        p(f"s_cmp_lt_u32 s{sTMP[0]}, 4"); p("s_cbranch_scc1 L_helper")
        p(f"s_sub_u32 s{sTMP[0]}, s{sTMP[0]}, 4")
        p(f"s_mul_i32 s{sTMP[1]}, s{sTMP[0]}, 9363"); p(f"s_lshr_b32 s{sTMP[1]}, s{sTMP[1]}, 16")
        p(f"s_mul_i32 s{sN}, s{sTMP[1]}, 7"); p(f"s_sub_u32 s{sN}, s{sTMP[0]}, s{sN}")
        p(f"s_and_b32 s{sKH}, s3, 1")
        p(f"s_lshr_b32 s{sR}, s3, 1"); p(f"s_lshl_b32 s{sR}, s{sR}, 2"); p(f"s_add_u32 s{sR}, s{sR}, s{sTMP[1]}")
        p(f"s_mul_i32 s{sS}, s{sKH}, 7"); p(f"s_add_u32 s{sS}, s{sS}, s{sN}")
        p(f"s_lshl_b32 s{sM1}, s{sW}, 10"); p(f"s_lshl_b32 s{sM2}, s{sW}, 11"); p(f"s_lshl_b32 s{sM4}, s{sW}, 12")
        def rho(dst, a, c):
            p(f"s_mul_i32 s{dst}, s{sN}, {a}"); p(f"s_mul_i32 s{sTMP[2]}, s{sTMP[1]}, {c}"); p(f"s_add_u32 s{dst}, s{dst}, s{sTMP[2]}")
            p(f"s_mul_i32 s{sTMP[2]}, s{dst}, 9363"); p(f"s_lshr_b32 s{sTMP[2]}, s{sTMP[2]}, 16"); p(f"s_mul_i32 s{sTMP[2]}, s{sTMP[2]}, 7")
            p(f"s_sub_u32 s{dst}, s{dst}, s{sTMP[2]}")
        if o["stamps"]: p("s_mov_b32 s43, s2")
        rho(3, o["a1"], o["c1"]); rho(2, o["a2"], o["c2"])
        p(f"s_lshl_b32 s{sCX}, s3, 7")
        p(f"s_add_u32 s{sCX+1}, s{sCX}, 128"); p(f"s_cmp_eq_u32 s{sCX+1}, 896"); p(f"s_cselect_b32 s{sCX+1}, 0, s{sCX+1}")
        t = ACB + 16
        self.vX = [t, t + 1, t + 2, t + 3]; self.vB = t + 4
        vl, vrow, vc8, vq, vt, vu = t + 20, t + 21, t + 22, t + 23, t + 24, t + 25
        self.tl = (vl, vrow, vc8, vq, vt, vu)
        p(f"v_and_b32 v{vl}, 63, v0")
        p(f"v_lshrrev_b32 v{vrow}, 3, v{vl}"); p(f"v_and_b32 v{vc8}, 7, v{vl}"); p(f"v_lshrrev_b32 v{vq}, 4, v{vl}")
        p(f"s_lshl_b32 s{sTMP[0]}, s{sR}, 2"); p(f"s_add_u32 s{sTMP[0]}, s{sTMP[0]}, s{sW}"); p(f"s_mul_i32 s{sTMP[0]}, s{sTMP[0]}, {32*896}")
        p(f"v_mul_u32_u24 v{vt}, 896, v{vrow}")
        p(f"v_xor_b32 v{vu}, v{vc8}, v{vq}")
        p(f"v_lshl_add_u32 v{self.vX[0]}, v{vu}, 4, v{vt}")
        p(f"v_xor_b32 v{self.vX[1]}, 64, v{self.vX[0]}")
        p(f"v_mov_b32 v{vC[0]}, v{self.vX[0]}"); p(f"v_mov_b32 v{vC[1]}, v{self.vX[1]}")
        p(f"s_and_b32 s{sTMP[2]}, s{sW}, 1"); p(f"s_lshl_b32 s{sTMP[2]}, s{sTMP[2]}, 6")
        p(f"v_xor_b32 v{self.vB}, s{sTMP[2]}, v{self.vX[0]}")
        p(f"s_lshl_b32 s{sTMP[2]}, s{sS}, 2"); p(f"s_add_u32 s{sTMP[2]}, s{sTMP[2]}, s{sW}"); p(f"s_mul_i32 s{sTMP[2]}, s{sTMP[2]}, {8*896}")
        p(f"v_add_u32 v{self.vB}, s{sTMP[2]}, v{self.vB}")
        p(f"v_add_u32 v{self.vX[0]}, s{sTMP[0]}, v{self.vX[0]}")
        p(f"v_add_u32 v{self.vX[1]}, s{sTMP[0]}, v{self.vX[1]}")
        p(f"v_add_u32 v{self.vX[2]}, {16*896 - 2048}, v{self.vX[0]}")
        p(f"v_add_u32 v{self.vX[3]}, {24*896 - 3072}, v{self.vX[1]}")
        p(f"v_add_u32 v{self.vX[1]}, {8*896 - 1024}, v{self.vX[1]}")
        p(f"v_lshlrev_b32 v{vLANE16}, 4, v{vl}")
        p.wait_smem()
        if o["stamps"]:
            p("v_mov_b32 v0, 0"); p.raw("v_writelane_b32 v0, s60, 0"); p.raw("v_writelane_b32 v0, s43, 63"); self.nstamp = 1
        K = lambda i: sKA + 2 * i
        self.srd(S_X, K(0), 2048 * 896); self.srd(S_BRE, K(3), 448 * 896); self.srd(S_BIM, K(4), 448 * 896)
        pro = self.issue[-1]
        for it in pro[:2]:
            for x in self.dma_item(it): self.emit(x)
        self.srd(S_AUX, K(13), 896)
        p(f"s_mov_b32 m0, {L_GW}")
        p(f"buffer_load_dwordx4 v{vLANE16}, s[{S_AUX}:{S_AUX+3}], 0 offen lds", "GW")
        vn, vtau, vhi = t + 26, t + 27, t + 28
        self.tn = (vn, vtau, vhi)
        p(f"v_and_b32 v{vn}, 31, v{vl}"); p(f"v_lshrrev_b32 v{vhi}, 5, v{vl}")
        p(f"v_and_b32 v{vtau}, 3, v{vn}")
        p(f"v_lshrrev_b32 v{vt}, 3, v{vn}"); p(f"v_lshl_add_u32 v{vtau}, v{vt}, 2, v{vtau}")
        p(f"v_and_b32 v{vt}, 4, v{vn}"); p(f"v_lshl_add_u32 v{vtau}, v{vt}, 2, v{vtau}")
        p(f"s_lshl_b32 s{sTMP[0]}, s{sS}, 6")
        p(f"v_lshl_add_u32 v{vt}, v{vtau}, 1, s{sTMP[0]}")
        self.vPar = [t + 30, t + 31, t + 32]
        p(f"global_load_ushort v{self.vPar[0]}, v{vt}, s[{K(1)}:{K(1)+1}]")
        p(f"global_load_ushort v{self.vPar[1]}, v{vt}, s[{K(2)}:{K(2)+1}]")
        p(f"global_load_ushort v{self.vPar[2]}, v{vt}, s[{K(7)}:{K(7)+1}]")
        for it in pro[2:]:
            for x in self.dma_item(it): self.emit(x)
        self.srd(S_WG, K(10), 448 * 3584); self.srd(S_WU, K(11), 448 * 3584); self.srd(S_WD, K(12), 1792 * 896)
        p(f"s_cmp_eq_u32 s{sKH}, 0")
        p(f"s_cselect_b32 s{S_C}, s{K(5)}, s{K(6)}"); p(f"s_cselect_b32 s{S_C+1}, s{K(5)+1}, s{K(6)+1}")
        p(f"s_mov_b32 s{S_C+2}, {448*896:#x}"); p(f"s_mov_b32 s{S_C+3}, 0x20000")
        self.srd(S_WS, K(16), WS_SIZE); self.srd(S_OUT, K(14), 2048 * 448 * 4)
        p(f"s_mov_b64 s[0:1], s[{K(8)}:{K(8)+1}]")
        p(f"s_mov_b64 s[{sDBG}:{sDBG+1}], s[{K(15)}:{K(15)+1}]")
        p(f"s_mov_b64 s[{sDSK}:{sDSK+1}], s[0:1]")
        for i in range(2, 7):
            p(f"s_add_u32 s{sCX+i}, s{sCX+i-1}, 128"); p(f"s_cmp_eq_u32 s{sCX+i}, 896"); p(f"s_cselect_b32 s{sCX+i}, 0, s{sCX+i}")
        self.vXA = [t + 6 + j for j in range(4)]; self.vXB = [t + 10 + j for j in range(4)]; self.vBJ = [t + 14 + j for j in range(4)]
        self.vGW, self.vGW0 = t + 18, t + 19
        p(f"s_and_b32 s{sT0}, s{sW}, 1"); p(f"s_lshl_b32 s{sT0}, s{sT0}, 1"); p(f"s_lshr_b32 s{sTMP[0]}, s{sW}, 1"); p(f"s_add_u32 s{sT0}, s{sT0}, s{sTMP[0]}")
        p(f"v_lshrrev_b32 v{vt}, 1, v{vtau}"); p(f"v_and_b32 v{vt}, 7, v{vt}"); p(f"v_xor_b32 v{vt}, v{vt}, v{vhi}")
        p(f"v_lshlrev_b32 v{vt}, 4, v{vt}"); p(f"v_lshl_add_u32 v{self.vBJ[0]}, v{vtau}, 7, v{vt}")
        p(f"s_lshl_b32 s{sTMP[0]}, s{sT0}, 12")
        for j in range(1, 4): p(f"v_xor_b32 v{self.vBJ[j]}, {32*j}, v{self.vBJ[0]}")
        for j in range(4):
            p(f"v_add_u32 v{self.vXA[j]}, s{sTMP[0]}, v{self.vBJ[j]}"); p(f"v_xor_b32 v{self.vXB[j]}, 0x1000, v{self.vXA[j]}")
        p(f"v_lshlrev_b32 v{self.vGW0}, 4, v{vhi}"); p(f"v_add_u32 v{self.vGW0}, {L_GW}, v{self.vGW0}")
        p(f"v_mov_b32 v{TMP}, 0"); p(f"v_mov_b32 v{TMP+1}, 0")
        p(f"v_lshlrev_b32 v{vt}, 3, v{vl}"); p(f"s_lshl_b32 s{sTMP[0]}, s{sW}, 9"); p(f"s_add_u32 s{sTMP[0]}, s{sTMP[0]}, {L_E}")
        p(f"v_add_u32 v{vt}, s{sTMP[0]}, v{vt}")
        p(f"ds_write_b64 v{vt}, v[{TMP}:{TMP+1}]")

    def setup_fillers(self):
        vl, vrow, vc8, vq, vt, vu = self.tl; vn, vtau, vhi = self.tn
        a = []
        A = a.append
        T0, T1, T2 = sTMP
        for i in range(7): A(f"s_mul_i32 s{sCW+i}, s{sCX+i}, {64*3584//128}")
        A(f"v_and_b32 v{vt}, 1, v{vq}"); A(f"v_lshlrev_b32 v{vt}, 1, v{vt}"); A(f"v_xor_b32 v{vt}, v{vt}, v{vc8}")
        A(f"v_mul_u32_u24 v{vu}, 3584, v{vrow}"); A(f"v_lshl_add_u32 v{vWG[0]}, v{vt}, 4, v{vu}")
        A(f"s_mul_i32 s{T2}, s{sW}, {16*3584}"); A(f"v_add_u32 v{vWG[0]}, s{T2}, v{vWG[0]}")
        A(f"s_lshl_b32 s{T2}, s{sS}, 8"); A(f"v_add_u32 v{vWG[0]}, s{T2}, v{vWG[0]}")
        A(f"v_xor_b32 v{vWU[0]}, 64, v{vWG[0]}")
        A(f"v_add_u32 v{vWG[1]}, {8*3584 - 1024}, v{vWG[0]}"); A(f"v_add_u32 v{vWU[1]}, {8*3584 - 1024}, v{vWU[0]}")
        r4, c4, g1, b0 = TMP + 2, TMP + 3, TMP + 4, TMP + 5
        A(f"v_bfe_u32 v{r4}, v{vl}, 2, 2"); A(f"v_and_b32 v{c4}, 3, v{vl}"); A(f"v_and_b32 v{b0}, 1, v{vq}")
        A(f"v_lshrrev_b32 v{g1}, 1, v{r4}")
        A(f"v_lshl_add_u32 v{vt}, v{b0}, 1, v{g1}")
        A(f"s_and_b32 s{T2}, s{sW}, 2"); A(f"v_xor_b32 v{vt}, s{T2}, v{vt}")
        A(f"v_lshlrev_b32 v{vt}, 5, v{vt}"); A(f"v_lshl_add_u32 v{vt}, v{c4}, 3, v{vt}")
        A(f"v_lshl_add_u32 v{vu}, v{vhi}, 3, v{r4}"); A(f"v_lshl_add_u32 v{vt}, v{vu}, 7, v{vt}")
        A(f"v_lshl_add_u32 v{vWT[0]}, v{b0}, 13, v{vt}"); A(f"v_xor_b32 v{vWT[1]}, 32, v{vWT[0]}")
        A(f"v_lshl_add_u32 v{vt}, v{g1}, 1, v{b0}"); A(f"v_lshlrev_b32 v{vt}, 5, v{vt}"); A(f"v_lshl_add_u32 v{vt}, v{c4}, 3, v{vt}")
        A(f"v_lshl_add_u32 v{vu}, v{vhi}, 2, v{r4}"); A(f"v_lshl_add_u32 v{vt}, v{vu}, 7, v{vt}")
        A(f"v_add_u32 v{vWD[0]}, s{sM4}, v{vt}"); A(f"v_xor_b32 v{vWD[1]}, 64, v{vWD[0]}")
        self.vTW, self.vTR = TMP + 30, TMP + 31
        A(f"v_lshlrev_b32 v{vt}, 5, v{vhi}"); A(f"v_lshl_add_u32 v{vt}, v{vtau}, 6, v{vt}"); A(f"v_add_u32 v{self.vTW}, s{sM4}, v{vt}")
        A(f"v_and_b32 v{vt}, 1, v{c4}"); A(f"v_lshlrev_b32 v{vt}, 5, v{vt}"); A(f"v_lshl_add_u32 v{vt}, v{b0}, 4, v{vt}")
        A(f"v_lshrrev_b32 v{vu}, 1, v{c4}"); A(f"v_lshl_add_u32 v{vt}, v{vu}, 3, v{vt}")
        A(f"v_lshl_add_u32 v{vu}, v{vhi}, 3, v{r4}"); A(f"v_lshl_add_u32 v{vt}, v{vu}, 6, v{vt}"); A(f"v_add_u32 v{self.vTR}, s{sM4}, v{vt}")
        A(f"v_bfe_u32 v{vt}, v{vn}, 1, 3"); A(f"s_lshl_b32 s{T2}, s{sW}, 1"); A(f"v_xor_b32 v{vt}, v{vt}, v{vhi}"); A(f"v_xor_b32 v{vt}, s{T2}, v{vt}")
        A(f"v_lshlrev_b32 v{vt}, 4, v{vt}"); A(f"v_lshl_add_u32 v{vCA}, v{vn}, 7, v{vt}")
        A(f"s_lshl_b32 s{T2}, s{sN}, 2"); A(f"s_add_u32 s{T2}, s{T2}, s{sW}"); A(f"s_mul_i32 s{T2}, s{T2}, {16*896}")
        A(f"v_add_u32 v{vC[0]}, s{T2}, v{vC[0]}"); A(f"s_add_u32 s{T2}, s{T2}, {8*896 - 1024}"); A(f"v_add_u32 v{vC[1]}, s{T2}, v{vC[1]}")
        A(f"v_lshlrev_b32 v{vt}, 2, v{b0}"); A(f"v_xor_b32 v{vt}, v{vt}, v{vc8}"); A(f"v_mul_u32_u24 v{vu}, 896, v{vrow}")
        A(f"v_lshl_add_u32 v{vD[0]}, v{vt}, 4, v{vu}")
        A(f"s_mul_i32 s{T2}, s{sKH}, 56"); A(f"s_add_u32 s{T2}, s{T2}, s{sW}"); A(f"s_mul_i32 s{T2}, s{T2}, {16*896}")
        A(f"v_add_u32 v{vD[0]}, s{T2}, v{vD[0]}"); A(f"s_lshl_b32 s{T2}, s{sN}, 7"); A(f"v_add_u32 v{vD[0]}, s{T2}, v{vD[0]}")
        A(f"v_add_u32 v{vD[1]}, {8*896 - 1024}, v{vD[0]}"); A(f"v_add_u32 v{vD[2]}, {64*896 - 2048}, v{vD[0]}"); A(f"v_add_u32 v{vD[3]}, {72*896 - 3072}, v{vD[0]}")
        A(f"s_mov_b32 s{sJ}, s2")
        for i in range(1, 7):
            A(lambda i=i: [self.p(x) for x in (f"s_add_u32 s{sJ+i}, s{sJ+i-1}, 1", f"s_cmp_eq_u32 s{sJ+i}, 7", f"s_cselect_b32 s{sJ+i}, 0, s{sJ+i}")])
        vj = TMP + 6
        A(f"s_lshl_b32 s{T2}, s{sT0}, 1"); A(f"v_add_u32 v{vj}, s{T2}, v{vhi}")
        A(f"v_lshlrev_b32 v{vt}, 3, v{vn}"); A(f"v_lshl_add_u32 v{vE}, v{vj}, 8, v{vt}"); A(f"v_add_u32 v{vE}, {L_E}, v{vE}")
        self.base[vE] = L_E
        A(f"s_lshl_b32 s{T2}, s{sT0}, 7"); A(f"s_add_u32 s{T2}, s{T2}, {L_G}"); A(f"v_lshl_add_u32 v{vGA}, v{vtau}, 2, s{T2}")
        self.base[vGA] = L_G
        A(lambda: [self.p(x) for x in (f"v_cmp_eq_u32 vcc, 0, v{vl}", f"v_bfrev_b32 v{vt}, 1", f"v_cndmask_b32 v{vFLAG}, v{vt}, 0, vcc")])
        A(f"s_lshl_b32 s{T2}, s{sR}, 2"); A(f"s_add_u32 s{sH0}, s{T2}, s{sT0}"); A(f"s_xor_b32 s{sH1}, s{sH0}, 1")
        A(f"s_mul_i32 s{sH0}, s{sH0}, {168*1024}"); A(f"s_mul_i32 s{sH1}, s{sH1}, {168*1024}")
        A(f"s_lshl_b32 s{T2}, s{sS}, 11"); A(f"s_add_u32 s{sHS}, s{sH0}, s{T2}"); A(f"s_add_u32 s{sHS}, s{sHS}, {112*1024}")
        A(f"s_lshl_b32 s{T2}, s{sS}, 13"); A(f"s_add_u32 s{sH0}, s{sH0}, s{T2}"); A(f"s_add_u32 s{sH1}, s{sH1}, s{T2}")
        A(f"s_and_b32 s{T2}, s{sM1}, 2048"); A(f"s_add_u32 s{sH0}, s{sH0}, s{T2}"); A(f"s_add_u32 s{sH1}, s{sH1}, s{T2}")
        A(f"s_lshl_b32 s{sFS}, s{sS}, 8"); A(f"s_add_u32 s{sFS}, s{sFS}, {WS_FL}")
        A(f"s_lshl_b32 s{T2}, s{sR}, 8"); A(f"s_add_u32 s{sFH}, s{T2}, {WS_FL + 4096}")
        pr, pi, pd = self.vPar
        x0, x1, x2, x3, x4, x5 = [TMP + 8 + i for i in range(6)]
        A(f"v_lshlrev_b32 v{pr}, 16, v{pr}"); A(f"v_lshlrev_b32 v{pi}, 16, v{pi}"); A(f"v_lshlrev_b32 v{pd}, 16, v{pd}")
        A(f"v_mul_f32 v{pd}, 0x3fb8aa3b, v{pd}"); A(f"v_exp_f32 v{pd}, v{pd}")
        A(f"v_cvt_pk_bf16_f32 v{pd}, v{pd}, v{pd}"); A(f"v_lshlrev_b32 v{pd}, 16, v{pd}")
        A(f"v_mul_f32 v{x0}, v{pd}, v{pr}"); A(f"v_mul_f32 v{x1}, v{pd}, v{pi}")
        A(f"v_mul_f32 v{x0}, 0x3fb8aa3b, v{x0}"); A(f"v_exp_f32 v{x0}, v{x0}")
        A(f"v_mul_f32 v{x1}, 0.15915494, v{x1}"); A(f"v_rndne_f32 v{x2}, v{x1}"); A(f"v_sub_f32 v{x1}, v{x1}, v{x2}")
        A(f"v_cos_f32 v{x2}, v{x1}"); A(f"v_sin_f32 v{x3}, v{x1}")
        A(f"v_mul_f32 v{vLR}, v{x0}, v{x2}"); A(f"v_mul_f32 v{vLI}, v{x0}, v{x3}"); A(f"v_sub_f32 v{vNLI}, 0, v{vLI}")
        A(f"v_mul_f32 v{x0}, v{pr}, v{pr}"); A(f"v_fmac_f32 v{x0}, v{pi}, v{pi}"); A(f"v_rcp_f32 v{x0}, v{x0}")
        A(f"v_add_f32 v{x1}, -1.0, v{vLR}"); A(f"v_add_f32 v{x0}, v{x0}, v{x0}")
        A(f"v_mul_f32 v{x2}, v{x1}, v{pr}"); A(f"v_fmac_f32 v{x2}, v{vLI}, v{pi}")
        A(f"v_mul_f32 v{x3}, v{vLI}, v{pr}"); A(f"v_fma_f32 v{x3}, -v{x1}, v{pi}, v{x3}")
        A(f"v_mul_f32 v{vKR}, v{x2}, v{x0}"); A(f"v_mul_f32 v{vKI}, v{x3}, v{x0}"); A(f"v_sub_f32 v{vNKI}, 0, v{vKI}")
        a += self.csq(x0, x1, vLR, vLI) + self.csq(x2, x3, x0, x1) + self.csq(x0, x1, x2, x3) + self.csq(vMR, vMI, x0, x1)
        A(lambda: [self.p(x) for x in (f"v_and_b32 v{vt}, 1, v{vj}", f"v_cmp_eq_u32 vcc, 1, v{vt}",
                                        f"v_cndmask_b32 v{vJR}, 1.0, v{vMR}, vcc", f"v_cndmask_b32 v{vJI}, 0, v{vMI}, vcc")])
        a += self.csq(x0, x1, vMR, vMI) + self.cmul(x4, x5, vJR, vJI, x0, x1)
        A(lambda: [self.p(x) for x in (f"v_and_b32 v{vt}, 2, v{vj}", f"v_cmp_eq_u32 vcc, 2, v{vt}",
                                        f"v_cndmask_b32 v{vJR}, v{vJR}, v{x4}, vcc", f"v_cndmask_b32 v{vJI}, v{vJI}, v{x5}, vcc")])
        a += self.csq(x2, x3, x0, x1) + self.cmul(x4, x5, vJR, vJI, x2, x3)
        A(lambda: [self.p(x) for x in (f"v_and_b32 v{vt}, 4, v{vj}", f"v_cmp_eq_u32 vcc, 4, v{vt}",
                                        f"v_cndmask_b32 v{vJR}, v{vJR}, v{x4}, vcc", f"v_cndmask_b32 v{vJI}, v{vJI}, v{x5}, vcc")])
        a += self.csq(vNR, vNI, x2, x3)
        a += self.csq(x0, x1, vNR, vNI) + self.csq(x2, x3, x0, x1) + self.csq(vN8R, vN8I, x2, x3)
        self.vSst, self.vSld, self.vFSo, self.vL4 = TMP + 26, TMP + 27, TMP + 28, TMP + 29
        A(lambda: [self.p(x) for x in (f"v_cmp_eq_u32 vcc, 7, v{vj}", f"v_bfrev_b32 v{vt}, 1", f"v_lshlrev_b32 v{vu}, 3, v{vn}",
                                        f"v_cndmask_b32 v{self.vSst}, v{vt}, v{vu}, vcc",
                                        f"v_cmp_eq_u32 vcc, 0, v{self.vSst}", f"v_cndmask_b32 v{self.vFSo}, v{vt}, 0, vcc")])
        A(f"s_sub_u32 s{T2}, s{sR}, 8"); A(f"s_lshl_b32 s{T2}, s{T2}, 8"); A(f"v_lshlrev_b32 v{vt}, 11, v{vhi}")
        A(f"v_sub_u32 v{self.vSld}, v{vu}, v{vt}"); A(f"v_add_u32 v{self.vSld}, s{T2}, v{self.vSld}")
        A(f"v_lshlrev_b32 v{self.vL4}, 2, v{vl}")
        A(lambda: [self.p(x) for x in (f"s_lshl_b32 s{T2}, s{sS}, 12", f"s_add_u32 s{T2}, s{T2}, {WS_S}",
                                        f"s_add_u32 s{S_AUX}, s{S_WS}, s{T2}", f"s_addc_u32 s{S_AUX+1}, s{S_WS+1}, 0",
                                        f"s_mov_b32 s{S_AUX+2}, 4096", f"s_mov_b32 s{S_AUX+3}, 0x20000")])
        return a

    def XR(self, pos, j, lt): return 32 * pos + 8 * j + 4 * lt

    def mlp_epilogue(self, acc, q, pk=False):
        L = []
        for t in range(2):
            for lt in range(2):
                a = acc + 32 * t + 16 * lt
                for j in range(8): L.append(f"v_mul_f32 v{a+j}, v{vOM[lt]}, v{a+j}")
                for j in range(8): L.append(f"v_mul_f32 v{a+j}, v{a+j}, v{a+8+j}")
                for j in range(4): L.append(f"v_cvt_pk_bf16_f32 v{a+8+j}, v{a+2*j}, v{a+2*j+1}")
                L.append(Ins(f"buffer_store_dwordx4 v[{a+8}:{a+11}], v{vLANE16}, s[{S_WS}:{S_WS+3}], s{(sH0, sH1)[lt]} offen" + (" offset:1024" if t else "") + " sc1", f"H{q}"))
        return L

    def flag(self, val, voff, soff, tags):
        def f():
            self.p(f"v_mov_b32 v{vVAL}, {val}")
            self.p.wait_tags(vm_tags=tags)
            self.p(f"buffer_store_dword v{vVAL}, v{voff}, s[{S_WS}:{S_WS+3}], s{soff} offen sc1")
        return f

    def phase1(self):
        p, o = self.p, self.o
        self.new_slots()
        first = {}
        def reads(c, j):
            k = (4 * c + j) & 1
            if c < 7:
                fb = FB + 12 * k; bx = self.pos[f"X{c}"]; bb = self.pos[f"B{c}"]
                L = []
                if j == 0: L.append(f"v_add_u32 v{self.vGW}, s{sCX+c}, v{self.vGW0}")
                x0, x1 = self.XR(c, j, 0), self.XR(c, j, 1)
                L += [("ds", f"ds_read_b128 a[{x0}:{x0+3}]", self.vXA[j], bx), ("ds", f"ds_read_b128 v[{fb}:{fb+3}]", self.vBJ[j], bb),
                      ("ds", f"ds_read_b128 v[{fb+4}:{fb+7}]", self.vBJ[j], bb + 4096), ("ds", f"ds_read_b128 v[{fb+8}:{fb+11}]", self.vGW, 32 * j),
                      ("ds", f"ds_read_b128 a[{x1}:{x1+3}]", self.vXB[j], bx)]
                return L
            fb = FB + 12 * k; b = self.pos[f"W{c-7}"]
            return [("ds", f"ds_read_b64_tr_b16 v[{fb+4*t+2*rd}:{fb+4*t+2*rd+1}]", vWT[t], b + j * 2048 + rd * 512) for t in range(2) for rd in range(2)]
        def barrier(c):
            tags = [it for it, u in self.use.items() if u == c] + (["GW"] if c == 0 else [])
            def f():
                p.wait_tags(vm_tags=tags, lg_all=True); p("s_barrier")
            return f
        ZA = ACB
        for c in range(21):
            for j in range(4):
                k = (4 * c + j) & 1; fb = FB + 12 * k
                pre = [barrier(c + 1)] if j == 3 else []
                if o["stamps"] and j == 0 and c in o.get("st1", (0, 1, 7, 14)): pre = pre + [self.stamp]
                if c < 7:
                    x0 = self.XR(c, j, 0); z = (c == 0 and j == 0)
                    ms = [f"v_mfma_f32_32x32x16_bf16 v[{ACS}:{ACS+15}], a[{x0}:{x0+3}], v[{fb}:{fb+3}], " + ("0" if z else f"v[{ACS}:{ACS+15}]"),
                          f"v_mfma_f32_32x32x16_bf16 v[{ACS+16}:{ACS+31}], a[{x0}:{x0+3}], v[{fb+4}:{fb+7}], " + ("0" if z else f"v[{ACS+16}:{ACS+31}]"),
                          f"v_mfma_f32_32x32x16_bf16 v[{ZA}:{ZA+15}], v[{fb+8}:{fb+11}], a[{x0}:{x0+3}], " + ("0" if z else f"v[{ZA}:{ZA+15}]")]
                else:
                    acc = ACA if c < 14 else ACB; pos = (c - 7) % 7; z = (pos == 0 and j == 0); ms = []
                    for t in range(2):
                        for lt in range(2):
                            a = acc + 32 * t + 16 * lt; x = self.XR(pos, j, lt)
                            ms.append(f"v_mfma_f32_32x32x16_bf16 v[{a}:{a+15}], v[{fb+4*t}:{fb+4*t+3}], a[{x}:{x+3}], " + ("0" if z else f"v[{a}:{a+15}]"))
                for m, t in enumerate(ms):
                    s = self.add_slot(t, pre if m == 0 else None)
                    if m == 0: first[(c, j)] = s
                nc, nj = (c, j + 1) if j < 3 else (c + 1, 0)
                if nc < 21:
                    R = reads(nc, nj); s0 = first[(c, j)]
                    h = (len(R) + 1) // 2
                    self.slots[s0]["post"] += R[:h]; self.slots[s0 + 1]["post"] += R[h:]
        nslot = len(self.slots)
        beta = lambda c: first[(c - 1, 3)] if c > 0 else 0
        wend = lambda c: beta(c + 1) if c < 21 else nslot
        self.beta = beta
        self.slots[0]["pre"] = [barrier(0)] + reads(0, 0) + self.slots[0]["pre"]
        for w in sorted(self.issue):
            if w < 0: continue
            L = []
            for it in self.issue[w]: L += self.dma_item(it)
            self.spread(beta(w), wend(w), L)
        for j, w in enumerate(self.move):
            if w <= 20: self.spread(beta(w) + 2, wend(w) - 3, self.move_item(j))
        self.spread(0, beta(5), self.setup_fillers())
        vl, vrow, vc8, vq, vt, vu = self.tl
        U = lambda i: ACS + i
        V = lambda i: ACS + 16 + i
        t0 = TMP
        G = [f"v_cvt_pk_bf16_f32 v{t0}, v{ZA}, v{ZA}", f"v_lshlrev_b32 v{t0}, 16, v{t0}", f"v_mul_f32 v{t0}, 0xbfb8aa3b, v{t0}",
             f"v_exp_f32 v{t0}, v{t0}", f"v_add_f32 v{t0}, 1.0, v{t0}", f"v_rcp_f32 v{t0}, v{t0}",
             f"v_cvt_pk_bf16_f32 v{t0}, v{t0}, v{t0}", f"v_lshlrev_b32 v{t0}, 16, v{t0}", f"v_sub_f32 v{t0+1}, 1.0, v{t0}",
             f"v_cvt_pk_bf16_f32 v{t0+1}, v{t0+1}, v{t0+1}", f"v_lshlrev_b32 v{vOM[0]}, 16, v{t0+1}",
             ("dsw", "ds_write_b32", vGA, f"v{t0}", L_G), ("dsw", "ds_write_b32", vGA, f"v{vOM[0]}", L_G + 512)]
        H1 = []; cur = (U(0), V(0)); pp = [(t0 + 2, t0 + 3), (t0 + 4, t0 + 5)]
        for i in range(1, 16):
            d = pp[i & 1]
            H1 += [f"v_fma_f32 v{d[0]}, v{vLR}, v{cur[0]}, v{U(i)}", f"v_fma_f32 v{d[1]}, v{vLR}, v{cur[1]}, v{V(i)}",
                   f"v_fmac_f32 v{d[0]}, v{vNLI}, v{cur[1]}", f"v_fmac_f32 v{d[1]}, v{vLI}, v{cur[0]}"]
            cur = d
        Eo = cur
        H1.append(("dsw", "ds_write_b64", vE, f"v[{Eo[0]}:{Eo[1]}]", L_E + 7 * 256))
        a0 = first[(7, 0)]
        self.spread(a0 + 1, beta(9) - 2, H1 + G)
        self.slots[beta(8)]["fill"].append(f"v_mov_b32 v{vVAL}, 0")
        self.slots[beta(8)]["fill"].append(f"global_load_dword v{vPOLL}, v{vVAL}, s[{sDBG}:{sDBG+1}] sc1")
        eb = ACB + 32
        P = [("ds", f"ds_read_b64 v[{eb+2*e}:{eb+2*e+1}]", vE, L_E + 256 * e) for e in range(7)]
        P.append(f"v_xor_b32 v{t0}, 128, v{vGA}")
        P.append(f"ds_read_b32 v{vOM[1]}, v{t0} offset:512")
        cur = (eb, eb + 1)
        for e in range(1, 7):
            d = (eb + 2 * e, eb + 2 * e + 1) if e < 6 else (vPR, vPI)
            P += self.cfma(d[0], d[1], vMR, vMI, cur[0], cur[1], eb + 2 * e, eb + 2 * e + 1); cur = d
        P += self.cfma(Eo[0], Eo[1], vMR, vMI, vPR, vPI, Eo[0], Eo[1])
        P.append(f"s_lshl_b32 s{sTMP[2]}, s{sR}, 8")
        P.append(Ins(f"buffer_store_dwordx2 v[{Eo[0]}:{Eo[1]}], v{self.vSst}, s[{S_AUX}:{S_AUX+3}], s{sTMP[2]} offen sc1", "SST"))
        self.spread(beta(9), beta(10) - 2, P)
        def gate_check():
            k = self.nlab; self.nlab += 1
            p(f"v_cmp_ne_u32 vcc, 0, v{vPOLL}"); p("s_cmp_lg_u64 vcc, 0"); p(f"s_cbranch_scc1 L_ok{k}")
            p(f"s_mov_b32 s{sSPIN}, 0"); p.label(f"L_spin{k}")
            p.raw(f"global_load_dword v{vPOLL}, v{vVAL}, s[{sDBG}:{sDBG+1}] sc1")
            p.raw(f"s_add_u32 s{sSPIN}, s{sSPIN}, 1"); p.raw(f"s_cmp_ge_u32 s{sSPIN}, {o['spin']}"); p.raw(f"s_cbranch_scc1 L_giveup{k}")
            p.raw("s_waitcnt vmcnt(0)"); p.raw(f"v_cmp_ne_u32 vcc, 0, v{vPOLL}"); p.raw("s_cmp_lg_u64 vcc, 0"); p.raw(f"s_cbranch_scc0 L_spin{k}")
            p.label(f"L_giveup{k}"); p.raw("s_waitcnt vmcnt(0)"); p.label(f"L_ok{k}")
        self.slots[beta(10)]["fill"].append(gate_check)
        KM = []
        for i in range(16):
            tt = t0 + (i & 1)
            KM += [f"v_mul_f32 v{tt}, v{vKI}, v{U(i)}", f"v_mul_f32 v{U(i)}, v{vKR}, v{U(i)}",
                   f"v_fmac_f32 v{U(i)}, v{vNKI}, v{V(i)}", f"v_fma_f32 v{V(i)}, v{vKR}, v{V(i)}, v{tt}"]
        self.spread(beta(10) + 1, beta(13), KM)
        wfs, wpoll = o.get("w_fs", 12), o.get("w_fspoll", 14)
        def fs_flag():
            p(f"s_lshl_b32 s{sTMP[2]}, s{sR}, 2"); p(f"s_add_u32 s{sTMP[2]}, s{sTMP[2]}, s{sFS}")
            self.flag(1, self.vFSo, sTMP[2], ["SST"])()
        self.slots[beta(wfs) - 6]["fill"].append(fs_flag)
        self.slots[beta(wpoll) - 8]["fill"].append(self.poll_issue(self.vL4, f"s{sFS}"))
        sb = TMP + 8
        SL = [lambda: [p(x) for x in (f"s_lshl_b32 s{sMASK}, 1, s{sR}", f"s_sub_u32 s{sMASK}, s{sMASK}, 1", f"s_mov_b32 s{sMASK+1}, 0")],
              self.poll_check(self.vL4, f"s{sFS}", 1)]
        for e in range(8):
            SL.append(f"buffer_load_dwordx2 v[{sb+2*e}:{sb+2*e+1}], v{self.vSld}, s[{S_AUX}:{S_AUX+3}], 0 offen sc1")
            if e < 7: SL.append(f"v_add_u32 v{self.vSld}, 0x100, v{self.vSld}")
        self.spread(beta(wpoll) + 4, beta(wpoll) + 12, SL)
        b0 = first[(14, 0)]
        EA = self.mlp_epilogue(ACA, 0) + [f"s_add_u32 s{sH0}, s{sH0}, 4096", f"s_add_u32 s{sH1}, s{sH1}, 4096"]
        self.spread(b0 + 2, beta(16), EA)
        def fh_addr():
            p(f"s_lshl_b32 s{sTMP[2]}, s{sS}, 2"); p(f"s_add_u32 s{sTMP[2]}, s{sTMP[2]}, s{sW}"); p(f"s_lshl_b32 s{sTMP[2]}, s{sTMP[2]}, 2")
            p(f"s_add_u32 s{sFP}, s{sFH}, s{sTMP[2]}")
        self.slots[beta(16)]["fill"].append(fh_addr)
        self.slots[beta(o.get("w_fa", 18)) - 6]["fill"].append(self.flag(1, vFLAG, sFP, ["H0"]))
        gb = ACA
        C2 = [f"v_and_b32 v{t0}, 32, v{self.vL4}", f"v_lshrrev_b32 v{t0}, 7, v{self.vL4}", f"v_lshlrev_b32 v{t0}, 6, v{t0}",
              f"s_lshl_b32 s{sTMP[2]}, s{sT0}, 7", f"s_add_u32 s{sTMP[2]}, s{sTMP[2]}, {L_G}", f"v_add_u32 v{t0}, s{sTMP[2]}, v{t0}"][1:]
        C2 += [f"ds_read_b128 v[{gb+4*e}:{gb+4*e+3}], v{t0} offset:{16*e}" for e in range(4)]
        cur = (sb, sb + 1)
        for e in range(1, 8):
            d = (sb + 2 * e, sb + 2 * e + 1)
            C2 += self.cfma(d[0], d[1], vNR, vNI, cur[0], cur[1], d[0], d[1]); cur = d
        C2 += [f"v_mov_b32 v{sb}, v{cur[0]}", f"v_mov_b32 v{sb+1}, v{cur[1]}",
               f"v_permlane32_swap_b32 v{cur[0]}, v{sb}", f"v_permlane32_swap_b32 v{cur[1]}, v{sb+1}"]
        C2 += self.cfma(cur[0], cur[1], vN8R, vN8I, sb, sb + 1, cur[0], cur[1])
        C2 += self.cfma(vPR, vPI, vJR, vJI, cur[0], cur[1], vPR, vPI)
        C2 += self.cmul(sb, sb + 1, vKR, vKI, vPR, vPI)
        cur = (sb, sb + 1)
        for i in range(16):
            C2 += [f"v_fmac_f32 v{U(i)}, v{vLR}, v{cur[0]}", f"v_fmac_f32 v{V(i)}, v{vLR}, v{cur[1]}",
                   f"v_fmac_f32 v{U(i)}, v{vNLI}, v{cur[1]}", f"v_fmac_f32 v{V(i)}, v{vLI}, v{cur[0]}"]
            cur = (U(i), V(i))
        pk = ACA + 16; fr = ACA + 32; tb = self.pos["TB"]
        for i in range(16): C2 += [f"v_mul_f32 v{U(i)}, v{gb+i}, v{U(i)}", f"v_mul_f32 v{V(i)}, v{gb+i}, v{V(i)}"]
        for i in range(8): C2.append(f"v_cvt_pk_bf16_f32 v{pk+i}, v{U(2*i)}, v{U(2*i+1)}")
        C2 += [("dsw", "ds_write_b128", self.vTW, f"v[{pk}:{pk+3}]", tb), ("dsw", "ds_write_b128", self.vTW, f"v[{pk+4}:{pk+7}]", tb + 16)]
        for i in range(8): C2.append(f"v_cvt_pk_bf16_f32 v{pk+8+i}, -v{V(2*i)}, -v{V(2*i+1)}")
        C2 += [("dsw", "ds_write_b128", self.vTW, f"v[{pk+8}:{pk+11}]", tb + 2048), ("dsw", "ds_write_b128", self.vTW, f"v[{pk+12}:{pk+15}]", tb + 2064)]
        for cpt in range(2):
            for q in range(2):
                for rd in range(2):
                    r = fr + 8 * cpt + 4 * q + 2 * rd
                    C2.append(("ds", f"ds_read_b64_tr_b16 v[{r}:{r+1}]", self.vTR, tb + cpt * 2048 + q * 1024 + rd * 256))
        C3 = []
        for cpt in range(2):
            for q in range(2):
                r = fr + 8 * cpt + 4 * q
                C3.append(Ins(f"buffer_store_dwordx4 v[{r}:{r+3}], v{vLANE16}, s[{S_WS}:{S_WS+3}], s{sHS} offen" + (" offset:1024" if q else "") + " sc1", "HS"))
            if cpt == 0: C3.append(f"s_add_u32 s{sHS}, s{sHS}, {28*1024}")
        w2a, w2b = o.get("w_scan", (16, 20))
        self.spread(beta(w2a) + 1, beta(w2b) - 4, C2)
        self.spread(beta(w2b) - 2, beta(w2b) + 2, C3)
        self.nslot1 = nslot

    def phase2(self):
        p, o = self.p, self.o
        RING = o["ring"]; ra = 144
        sJA, sJB, sJS = sCX, sCW, sJ
        vH = [5, 6, 7, 8]
        ACC = [64, 96, 128, 192]
        order = [("A", tp) for tp in range(4)] + [("S", 0), ("S", 1), ("B", 0), ("B", 1), ("S", 2), ("B", 2), ("S", 3), ("B", 3)]
        steps = [(part, tp, j) for (part, tp) in order for j in range(7)]
        T2 = sTMP[2]
        su = []
        for j in range(7):
            su += [f"s_lshl_b32 s{sJA+j}, s{sJ+j}, 13", f"s_add_u32 s{sJB+j}, s{sJA+j}, 4096"]
        su += [f"s_mul_i32 s{T2}, s{sKH}, {-28*1024 & 0xffffffff:#x}", f"s_add_u32 s{T2}, s{T2}, {112*1024}"]
        for j in range(7): su += [f"s_lshl_b32 s{sJS+j}, s{sJ+j}, 12", f"s_add_u32 s{sJS+j}, s{sJS+j}, s{T2}"]
        for tp in range(4):
            su += [f"s_lshl_b32 s{T2}, s{sKH}, 1", f"s_add_u32 s{T2}, s{T2}, {2+tp}", f"s_and_b32 s{T2}, s{T2}, 3",
                   f"s_lshl2_add_u32 s{T2}, s{sR}, s{T2}", f"s_mul_i32 s{T2}, s{T2}, {168*1024}", f"s_add_u32 s{T2}, s{T2}, s{sM1}",
                   f"v_add_u32 v{vH[tp]}, s{T2}, v{vLANE16}", f"s_mul_i32 s{T2}, s{sKH}, {56*1024}", f"v_add_u32 v{vH[tp]}, s{T2}, v{vH[tp]}"]
        lastdma = max(w for w in self.issue)
        assert lastdma <= 18
        self.spread(self.beta(19), self.beta(20), su)
        def hload(k):
            part, tp, j = steps[k]; r = ra + 4 * (k % RING)
            so = {"A": sJA, "B": sJB, "S": sJS}[part] + j
            return f"buffer_load_dwordx4 a[{r}:{r+3}], v{vH[tp]}, s[{S_WS}:{S_WS+3}], s{so} offen sc1"
        def maskhalf():
            p(f"s_mul_i32 s{T2}, s{sKH}, 28"); p(f"s_lshl_b64 s[{sMASK}:{sMASK+1}], 0xfffffff, s{T2}")
        def maskall():
            p(f"s_mov_b32 s{sMASK}, -1"); p(f"s_mov_b32 s{sMASK+1}, 0xffffff")
        n1 = self.nslot1
        self.slots[self.beta(20)]["fill"].append(self.poll_issue(self.vL4, f"s{sFH}"))
        early = o.get("early", 8)
        E = [maskhalf, self.poll_check(self.vL4, f"s{sFH}", 1)] + [hload(k) for k in range(early)]
        self.spread(n1 - 8, n1, E)
        EB = self.mlp_epilogue(ACB, 1)
        s = self.add_slot(None, ([self.stamp] if o["stamps"] else []) + EB + [self.flag(2, vFLAG, sFP, ["HS"])] + [hload(k) for k in range(early, RING)] + ([self.stamp] if o["stamps"] else []))
        first = {}
        started = set()
        for k, (part, tp, j) in enumerate(steps):
            r = ra + 4 * (k % RING); wa = self.W2A[j] + {"A": 0, "B": 8, "S": 16}[part]
            for dt in range(2):
                a = ACC[tp] + 16 * dt
                c = f"v[{a}:{a+15}]" if (tp, dt) in started else "0"
                started.add((tp, dt))
                s = self.add_slot(f"v_mfma_f32_32x32x16_bf16 v[{a}:{a+15}], a[{wa+4*dt}:{wa+4*dt+3}], a[{r}:{r+3}], {c}")
                if dt == 0:
                    first[k] = s
                    if o["stamps"] and o.get("st2") and k % 7 == 0 and k: self.slots[s]["pre"].append(self.stamp)
            if k + RING < len(steps): self.slots[s]["post"].append(hload(k + RING))
        nst = len(steps)
        last = {tp: max(k for k, st in enumerate(steps) if st[1] == tp) for tp in range(4)}
        self.slots[first[o.get("k_fb", 8)]]["fill"].append(self.flag(3, vFLAG, sFP, ["H1"]))
        for (k0, val, mask) in ((28, 2, maskall), (42, 3, maskhalf)):
            kc = k0 - RING
            self.slots[first[kc - o.get("poll_lead", 5)]]["fill"].append(self.poll_issue(self.vL4, f"s{sFH}"))
            self.slots[first[kc]]["fill"] += [mask, self.poll_check(self.vL4, f"s{sFH}", val)]
        vRW = [26, 27, 28, 29]; vRR = 30; vO = 31; vXo = 32; vPo = 33; SK = TMP; t = 40
        ln = self.vL4
        su = [f"v_lshrrev_b32 v{t}, 2, v{ln}",
              f"v_and_b32 v{t+1}, 7, v{t}", f"v_lshrrev_b32 v{t+2}, 5, v{t}", f"v_xor_b32 v{t+1}, v{t+1}, v{t+2}", f"v_lshlrev_b32 v{t+1}, 4, v{t+1}",
              f"v_subrev_u32 v{t+2}, {L_G}, v{vGA}", f"v_and_b32 v{t+2}, 0x7f, v{t+2}",
              f"v_lshl_add_u32 v{t+1}, v{t+2}, 6, v{t+1}", f"s_lshl_b32 s{T2}, s{sW}, 13", f"v_add_u32 v{vRW[0]}, s{T2}, v{t+1}"]
        su += [f"v_xor_b32 v{vRW[a]}, {32*a}, v{vRW[0]}" for a in range(1, 4)]
        su += [f"v_lshrrev_b32 v{t+1}, 4, v{t}", f"v_and_b32 v{t+2}, 15, v{t}",
               f"s_and_b32 s{T2}, s{sW}, 2", f"s_lshl_b32 s{T2}, s{T2}, 1", f"v_xor_b32 v{t+3}, v{t+2}, v{t+1}", f"v_xor_b32 v{t+3}, s{T2}, v{t+3}",
               f"v_lshlrev_b32 v{t+3}, 4, v{t+3}", f"v_lshl_add_u32 v{t+3}, v{t+1}, 8, v{t+3}", f"v_add_u32 v{vRR}, s{sM2}, v{t+3}",
               f"s_lshl_b32 s{T2}, s{sKH}, 3", f"s_add_u32 s{T2}, s{T2}, s{sW}", f"s_lshl_b32 s{T2}, s{T2}, 3", f"v_add_u32 v{t+1}, s{T2}, v{t+1}",
               f"v_lshlrev_b32 v{t+4}, 2, v{t+1}", f"v_add_u32 v{t+4}, {L_G}, v{t+4}",
               f"s_lshl_b32 s{T2}, s{sR}, 7", f"v_add_u32 v{t+1}, s{T2}, v{t+1}", f"v_mul_u32_u24 v{t+1}, 896, v{t+1}",
               f"s_lshl_b32 s{T2}, s{sN}, 7", f"v_lshl_add_u32 v{t+2}, v{t+2}, 3, s{T2}",
               f"v_add_u32 v{vXo}, v{t+1}, v{t+2}", f"v_lshlrev_b32 v{vO}, 1, v{vXo}",
               f"global_load_dwordx2 v[{t+6}:{t+7}], v{t+2}, s[{sDSK}:{sDSK+1}]"]
        for e in range(4):
            off = (32 * (e >> 1) + 4 * (e & 1))
            su += [f"s_mov_b32 s{T2}, {off*896}", f"buffer_load_dwordx2 v[{t+8+2*e}:{t+9+2*e}], v{vXo}, s[{S_X}:{S_X+3}], s{T2} offen",
                   f"ds_read_b32 v{t+16+e}, v{t+4} offset:{4*off}"]
        su += [f"s_mul_i32 s{sPs}, s{sR}, 14", f"s_add_u32 s{sPr}, s{sPs}, s{sN}", f"s_add_u32 s{sPs}, s{sPs}, s{sS}",
               f"s_mul_i32 s{T2}, s{sKH}, -7", f"s_add_u32 s{T2}, s{T2}, 7", f"s_add_u32 s{sPr}, s{sPr}, s{T2}",
               f"s_lshl_b32 s{sPs}, s{sPs}, 14", f"s_lshl_b32 s{sPr}, s{sPr}, 14",
               f"s_add_u32 s{sPs}, s{sPs}, {WS_PART}", f"s_add_u32 s{sPr}, s{sPr}, {WS_PART}",
               f"v_add_u32 v{vPo}, s{sM2}, v{vLANE16}",
               f"s_add_u32 s{T2}, s{T2}, s{sN}", f"s_lshl_b32 s{T2}, s{T2}, 2", f"s_add_u32 s{T2}, s{T2}, s{sW}", f"s_lshl_b32 s{T2}, s{T2}, 2",
               f"s_add_u32 s{sFPr}, s{sFH}, s{T2}", f"s_add_u32 s{sFPr}, s{sFPr}, 4096"]
        for r_ in vRW + [vRR]: self.base[r_] = 0
        self.spread(first[0], first[10], su)
        sk = [f"v_lshlrev_b32 v{t}, 16, v{t+6}", f"v_and_b32 v{t+1}, 0xffff0000, v{t+6}", f"v_lshlrev_b32 v{t+2}, 16, v{t+7}", f"v_and_b32 v{t+3}, 0xffff0000, v{t+7}"]
        for e in range(4):
            x = t + 8 + 2 * e; d = SK + 4 * e
            sk += [f"v_lshlrev_b32 v{d}, 16, v{x}", f"v_and_b32 v{d+1}, 0xffff0000, v{x}", f"v_lshlrev_b32 v{d+2}, 16, v{x+1}", f"v_and_b32 v{d+3}, 0xffff0000, v{x+1}"]
            sk += [f"v_mul_f32 v{d+i}, v{d+i}, v{t+i}" for i in range(4)]
            sk += [f"v_cvt_pk_bf16_f32 v{x}, v{d}, v{d+1}", f"v_cvt_pk_bf16_f32 v{x+1}, v{d+2}, v{d+3}"]
            sk += [f"v_lshlrev_b32 v{d}, 16, v{x}", f"v_and_b32 v{d+1}, 0xffff0000, v{x}", f"v_lshlrev_b32 v{d+2}, 16, v{x+1}", f"v_and_b32 v{d+3}, 0xffff0000, v{x+1}"]
            sk += [f"v_mul_f32 v{d+i}, v{d+i}, v{t+16+e}" for i in range(4)]
        self.spread(first[28], first[42], sk)
        RD = 160
        PT = TMP + 16
        PTs = [TMP + 16, 40]
        def red_write(tp):
            rb = self.pos[f"RB{tp&1}"]
            return [("dsw", "ds_write_b128", vRW[a], f"v[{ACC[tp]+16*dt+4*a}:{ACC[tp]+16*dt+4*a+3}]", rb + 128 * dt) for dt in range(2) for a in range(4)]
        def red_bar():
            p.wait_tags(lg_all=True); p("s_barrier")
        def red_read(tp):
            rb = self.pos[f"RB{tp&1}"]
            return [("ds", f"ds_read_b128 v[{RD+16*i+4*w}:{RD+16*i+4*w+3}]", vRR, rb + 8192 * w + 1024 * i) for i in range(2) for w in range(4)]
        def red_fin(tp):
            L = []
            for i in range(2):
                b = RD + 16 * i
                L += [f"v_add_f32 v{b+e}, v{b+e}, v{b+4+e}" for e in range(4)] + [f"v_add_f32 v{b+8+e}, v{b+8+e}, v{b+12+e}" for e in range(4)]
                L += [f"v_add_f32 v{b+e}, v{b+e}, v{b+8+e}" for e in range(4)]
                if tp < 2:
                    if tp == 1 and i == 0: L.append(f"s_add_u32 s{sPs}, s{sPs}, 8192")
                    L.append(Ins(f"buffer_store_dwordx4 v[{b}:{b+3}], v{vPo}, s[{S_WS}:{S_WS+3}], s{sPs} offen" + (" offset:1024" if i else "") + " sc1", "PS"))
                else:
                    L += [f"v_add_f32 v{SK+8*(tp-2)+4*i+e}, v{b+e}, v{SK+8*(tp-2)+4*i+e}" for e in range(4)]
            return L
        def out_store(tp):
            L = []
            for i in range(2):
                d = SK + 8 * (tp - 2) + 4 * i
                L += [f"v_add_f32 v{d+e}, v{d+e}, v{PTs[tp-2]+4*i+e}" for e in range(4)]
                L += [f"s_mov_b32 s{T2}, {(32*(tp-2) + 4*i)*1792}",
                      f"buffer_store_dwordx4 v[{d}:{d+3}], v{vO}, s[{S_OUT}:{S_OUT+3}], s{T2} offen {o['out_flags']}".rstrip()]
            return L
        for tp in range(3):
            k = last[tp] + 1
            self.spread(first[k] + 1, first[k + 2] + 1, red_write(tp))
            self.slots[first[k + 3]]["fill"] += [red_bar] + red_read(tp)
            self.spread(first[k + 4], first[k + 6] + 1, red_fin(tp))
        kf = last[1] + 1 + o.get("k_fp", 16)
        self.slots[first[kf]]["fill"] += [f"s_add_u32 s{sFP}, s{sFP}, 4096", self.flag(1, vFLAG, sFP, ["PS"])]
        self.slots[first[nst - 3]]["fill"].append(self.poll_issue(vFLAG, f"s{sFPr}"))
        def one(): p(f"s_mov_b64 s[{sMASK}:{sMASK+1}], 1")
        PL = [one, self.poll_check(vFLAG, f"s{sFPr}", 1)]
        for e in range(4):
            d = PTs[e >> 1] + 4 * (e & 1)
            if e == 2: PL.append(f"s_add_u32 s{sPr}, s{sPr}, 8192")
            PL.append(f"buffer_load_dwordx4 v[{d}:{d+3}], v{vPo}, s[{S_WS}:{S_WS+3}], s{sPr} offen" + (" offset:1024" if e & 1 else "") + " sc1")
        tail = ([self.stamp] if o["stamps"] else []) + red_write(3) + PL + [red_bar] + red_read(3) + red_fin(3) + out_store(2) + out_store(3)
        self.add_slot(None, tail)

    def finish(self):
        p, o = self.p, self.o
        if o["stamps"]:
            self.stamp()
            p.wait_tags(vm_all=True); self.stamp()
            p(f"v_readlane_b32 s{sTMP[0]}, v0, 63"); p(f"s_lshl_b32 s{sTMP[0]}, s{sTMP[0]}, 2"); p(f"s_add_u32 s{sTMP[0]}, s{sTMP[0]}, s{sW}")
            p(f"s_lshl_b32 s{sTMP[0]}, s{sTMP[0]}, 8"); p(f"s_add_u32 s{sTMP[0]}, s{sTMP[0]}, {WS_STAMP}")
            p(f"buffer_store_dword v0, v{self.vL4}, s[{S_WS}:{S_WS+3}], s{sTMP[0]} offen")
            if o.get("dbgspan"):
                p(f"s_cmp_lg_u32 s{sW}, 0"); p("s_cbranch_scc1 L_nodbg")
                p(f"v_readlane_b32 s{sTMP[0]}, v0, 0"); p(f"s_not_b32 s{sTMP[0]}, s{sTMP[0]}"); p.raw(f"v_writelane_b32 v0, s{sTMP[0]}, 14")
                p("s_mov_b64 exec, 0x7fff")
                p(f"global_atomic_umax v{self.vL4}, v0, s[{sDBG}:{sDBG+1}] offset:4 sc1")
                p.label("L_nodbg")
        p("s_endpgm")

    def helper(self):
        p, o = self.p, self.o
        p.drained(); p.smem = set()
        K = lambda i: sKA + 2 * i
        p.label("L_helper")
        p(f"s_lshl_b32 s3, s3, 2"); p(f"s_add_u32 s3, s3, s{sTMP[0]}")
        p.wait_smem()
        self.srd(S_WS, K(16), WS_SIZE)
        p("s_cmp_lg_u32 s3, 0"); p("s_cbranch_scc1 L_noinit")
        for i in range(4): p(f"v_mov_b32 v{4+i}, 0")
        p("v_lshlrev_b32 v1, 4, v0")
        for i in range(3):
            p(f"s_mov_b32 s{sTMP[1]}, {WS_FL + 4096*i}")
            p(f"buffer_store_dwordx4 v[4:7], v1, s[{S_WS}:{S_WS+3}], s{sTMP[1]} offen sc1")
        p.raw("s_waitcnt vmcnt(0)"); p.drained()
        p("s_barrier")
        p("v_mov_b32 v5, 1")
        p("v_cmp_eq_u32 vcc, 0, v0"); p("s_and_saveexec_b64 s[50:51], vcc"); p("s_cbranch_execz L_nosig")
        p(f"global_store_dword v4, v5, s[{K(15)}:{K(15)+1}] sc1")
        p.label("L_nosig")
        p("s_mov_b64 exec, s[50:51]")
        p.label("L_noinit")
        if o["prefetch"]:
            p("s_getpc_b64 s[50:51]")
            p.label("L_pc")
            p(f"s_sub_u32 s50, s50, L_pc-{KN}_kernel"); p("s_subb_u32 s51, s51, 0")
            p("v_lshlrev_b32 v1, 7, v0"); p(f"v_min_u32 v2, L_pc-{KN}_kernel, v1")
            p("global_load_dword v8, v2, s[50:51]")
            self.srd(S_WG, K(10), 448 * 3584); self.srd(S_WU, K(11), 448 * 3584); self.srd(S_WD, K(12), 1792 * 896)
            self.srd(S_BRE, K(5), 448 * 896); self.srd(S_BIM, K(6), 448 * 896)
            p("v_cmp_gt_u32 vcc, 196, v0"); p("v_bfrev_b32 v3, 1")
            p("v_lshlrev_b32 v2, 8, v0"); p("v_cndmask_b32 v2, v3, v2, vcc")
            p("v_cndmask_b32 v1, v3, v1, vcc")
            p(f"s_mul_i32 s{sTMP[1]}, s3, {14*3584}")
            p(f"buffer_load_dword v9, v2, s[{S_WG}:{S_WG+3}], s{sTMP[1]} offen")
            p(f"buffer_load_dword v10, v2, s[{S_WU}:{S_WU+3}], s{sTMP[1]} offen")
            p(f"buffer_load_dword v11, v2, s[{S_WG}:{S_WG+3}], s{sTMP[1]} offen offset:128")
            p(f"buffer_load_dword v12, v2, s[{S_WU}:{S_WU+3}], s{sTMP[1]} offen offset:128")
            p(f"buffer_load_dword v13, v2, s[{S_WD}:{S_WD+3}], s{sTMP[1]} offen")
            p(f"buffer_load_dword v14, v2, s[{S_WD}:{S_WD+3}], s{sTMP[1]} offen offset:128")
            p(f"s_and_b32 s{sTMP[2]}, s3, 15"); p(f"s_mul_i32 s{sTMP[2]}, s{sTMP[2]}, {196*128}")
            p("s_cmp_lt_u32 s3, 16"); p("s_cbranch_scc1 L_cre")
            p(f"buffer_load_dword v15, v1, s[{S_BIM}:{S_BIM+3}], s{sTMP[2]} offen")
            p("s_branch L_cdone")
            p.label("L_cre")
            p(f"buffer_load_dword v16, v1, s[{S_BRE}:{S_BRE+3}], s{sTMP[2]} offen")
            p.label("L_cdone")
            p.raw("s_waitcnt vmcnt(0)")
        p.label("L_end")
        p("s_endpgm")

    def build(self):
        self.plan()
        self.prologue()
        self.phase1()
        self.phase2()
        self.run_slots()
        self.finish()
        self.helper()
        ins, added = pad_hazards(self.p.out)
        body = "\n".join(("" if i.kind == "label" else "    ") + i.text for i in ins)
        txt = HEADER + f"; @launch grid=(256,1,1) block=(256,1,1) lds={LDS_BYTES}\n"
        txt += '.amdgcn_target "amdgcn-amd-amdhsa--gfx950"\n.text\n'
        txt += f".globl {KN}_kernel\n.p2align 8\n.type {KN}_kernel,@function\n{KN}_kernel:\n" + body + "\n"
        txt += f""".section .rodata,"a"
.p2align 6
.amdhsa_kernel {KN}_kernel
  .amdhsa_next_free_vgpr 512
  .amdhsa_next_free_sgpr 102
  .amdhsa_accum_offset 256
  .amdhsa_group_segment_fixed_size 0
  .amdhsa_kernarg_size 136
  .amdhsa_user_sgpr_count 2
  .amdhsa_user_sgpr_kernarg_segment_ptr 1
  .amdhsa_system_sgpr_workgroup_id_x 1
  .amdhsa_float_denorm_mode_32 3
.end_amdhsa_kernel
"""
        self.stats = dict(n=len(ins), nops=added, waits=self.p.nwait)
        return txt

if __name__ == "__main__":
    out = sys.argv[1] if len(sys.argv) > 1 else "k.s"
    opts = json.loads(sys.argv[2]) if len(sys.argv) > 2 else {}
    g = Gen(**opts)
    open(out, "w").write(g.build())
    print(out, g.stats, {k: v // UNIT for k, v in g.pos.items()})
```

```python
import sys, json
from asmlib import Prog, Ins, pad_hazards

KN = "gated_mix__ssm_conv_s5__glu_gated_bilinear__prompt"
HEADER = open("cdna_kernels/%s.s.ref" % KN).read().split("; Override launch geometry")[0]

WS_H = 0
WS_PART = 12 << 20
WS_S = 16 << 20
WS_FL = 17 << 20
WS_STAMP = 200 << 20
WS_SIZE = 268435456
OOB = 0x80000000

UNIT = 8192
NUNITS = 19
PERS = NUNITS * UNIT
L_G = PERS
L_GW = PERS + 1024
L_E = PERS + 2048
LDS_BYTES = 160 * 1024

S_X, S_BRE, S_BIM, S_WG, S_WU, S_WD, S_C, S_WS, S_OUT, S_AUX = 4, 8, 12, 16, 20, 24, 28, 32, 36, 40
sW, sR, sS, sN, sKH, sT0 = 44, 45, 46, 47, 48, 49
sM1, sM2, sM4 = 50, 51, 52
sTMP = [53, 54, 55]
sCX = 56
sCW = 63
sJ = 70
sH0, sH1, sHS, sFH, sFP, sFPr, sFS, sPs, sPr = 77, 78, 79, 80, 81, 82, 83, 84, 85
sDSK = 86
sDBG = 88
sSPIN = 90
sMASK = 92
sSTAMP = 94
sKA = 68

vLANE16 = 1; vFLAG = 2; vWT = [3, 4]; vWG = [5, 6]; vWU = [7, 8]
vLR, vLI, vNLI = 9, 10, 11
vKR, vKI, vNKI = 12, 13, 14
vMR, vMI = 15, 16
vNR, vNI = 17, 18
vN8R, vN8I = 19, 20
vJR, vJI = 21, 22
vE = 23
vOM = [24, 25]
vD = [26, 27, 28, 29]; vC = [30, 31]; vWD = [32, 33]; vCA = 34
vPR, vPI = 36, 37
vVAL = 35; vPOLL = 38; vGA = 39
FB = 40
ACS = 64; ACA = 96; ACB = 160; TMP = 224

def tau(n): return 16 * ((n >> 2) & 1) + 4 * (n >> 3) + (n & 3)

class Gen:
    def __init__(self, **o):
        self.o = dict(a1=1, c1=0, a2=0, c2=0, ring=16, stamps=False, out_flags="", prefetch=True, spin=1 << 16)
        self.o.update(o)
        self.p = Prog()
        self.base = {}
        self.nstamp = 0
        self.nlab = 0

    def lds(self, reg, off):
        b = self.base.get(reg, 0)
        if not (0 <= off - b <= 65535):
            nb = (off // 32768) * 32768
            d = nb - b
            self.p(f"v_add_u32 v{reg}, {d & 0xffffffff:#x}, v{reg}")
            self.base[reg] = b = nb
        return off - b
    def stamp(self):
        if not self.o["stamps"]: return
        k = self.nstamp; self.nstamp += 1
        p = self.p
        p.raw(f"s_memrealtime s[{sSTAMP}:{sSTAMP+1}]")
        p.raw("s_waitcnt lgkmcnt(0)"); p.lg = []
        p.raw(f"v_writelane_b32 v0, s{sSTAMP}, {k}")
    def cmul(self, dr, di, ar, ai, br, bi):
        return [f"v_mul_f32 v{dr}, v{ar}, v{br}", f"v_mul_f32 v{di}, v{ar}, v{bi}",
                f"v_fma_f32 v{dr}, -v{ai}, v{bi}, v{dr}", f"v_fmac_f32 v{di}, v{ai}, v{br}"]
    def cfma(self, dr, di, ar, ai, br, bi, cr, ci):
        return [f"v_fma_f32 v{dr}, v{ar}, v{br}, v{cr}", f"v_fma_f32 v{di}, v{ar}, v{bi}, v{ci}",
                f"v_fma_f32 v{dr}, -v{ai}, v{bi}, v{dr}", f"v_fmac_f32 v{di}, v{ai}, v{br}"]
    def csq(self, dr, di, ar, ai):
        return [f"v_mul_f32 v{dr}, v{ar}, v{ar}", f"v_mul_f32 v{di}, v{ar}, v{ai}",
                f"v_fma_f32 v{dr}, -v{ai}, v{ai}, v{dr}", f"v_add_f32 v{di}, v{di}, v{di}"]
    def srd(self, s, ptr, size):
        p = self.p
        p(f"s_mov_b32 s{s}, s{ptr}"); p(f"s_mov_b32 s{s+1}, s{ptr+1}")
        p(f"s_mov_b32 s{s+2}, {size:#x}"); p(f"s_mov_b32 s{s+3}, 0x20000")

    def poll_issue(self, voff, soff, srd=S_WS):
        return f"buffer_load_dword v{vPOLL}, v{voff}, s[{srd}:{srd+3}], {soff} offen sc1"
    def poll_check(self, voff, soff, minval, srd=S_WS):
        def f():
            p = self.p; k = self.nlab; self.nlab += 1
            p(f"v_cmp_le_u32 vcc, {minval}, v{vPOLL}")
            p(f"s_andn2_b64 vcc, s[{sMASK}:{sMASK+1}], vcc")
            p(f"s_cbranch_scc0 L_ok{k}")
            p(f"s_mov_b32 s{sSPIN}, 0")
            p.label(f"L_spin{k}")
            p.raw(self.poll_issue(voff, soff, srd))
            p.raw(f"s_add_u32 s{sSPIN}, s{sSPIN}, 1")
            p.raw(f"s_cmp_ge_u32 s{sSPIN}, {self.o['spin']}")
            p.raw(f"s_cbranch_scc1 L_giveup{k}")
            p.raw("s_waitcnt vmcnt(0)")
            p.raw(f"v_cmp_le_u32 vcc, {minval}, v{vPOLL}")
            p.raw(f"s_andn2_b64 vcc, s[{sMASK}:{sMASK+1}], vcc")
            p.raw(f"s_cbranch_scc1 L_spin{k}")
            p.label(f"L_giveup{k}")
            p.raw("s_waitcnt vmcnt(0)")
            if self.o["stamps"]: p.raw(f"v_writelane_b32 v0, s{sSPIN}, {52+k}")
            p.label(f"L_ok{k}")
        return f

    def plan(self):
        o = self.o
        issue = o.get("issue") or {
            -1: ["X0", "B0", "X1", "B1"], 0: ["X2", "B2"], 1: ["X3", "B3"], 2: ["X4", "B4"], 3: ["X5", "B5"], 4: ["X6", "B6"],
            5: ["W0"], 6: ["W1"], 7: ["W2", "W3"], 8: ["W4", "W5"], 9: ["W6", "D0"], 10: ["W7", "C0"], 11: ["W8", "C1"],
            12: ["W9", "D1"], 13: ["W10", "D2"], 14: ["W11", "C2", "C3"], 15: ["W12", "D3"], 16: ["W13", "D4"], 17: ["C4", "D5", "C5"], 18: ["D6", "C6"]}
        issue = {int(k): v for k, v in issue.items()}
        move = o.get("move") or [12, 15, 16, 17, 19, 19, 20]
        self.issue, self.move = issue, move
        size = {"X": 2, "B": 1, "W": 2, "D": 2, "C": 1}
        items = []
        for w in sorted(issue):
            for it in issue[w]:
                k, i = it[0], int(it[1:])
                use = i if k in "XB" else (7 + i if k == "W" else move[i])
                assert w < use, it
                items.append((w, use, size[k], it))
        items.append((o.get("tb0", 17), 20, 2, "TB"))
        items.append((21, 99, 4, "RB0")); items.append((21, 99, 4, "RB1"))
        items.sort(key=lambda t: t[0])
        self.use = {it: u for (_, u, _, it) in items}
        for w in range(-1, 22):
            occ = sum(sz for (w2, u2, sz, it) in items if w2 <= w <= u2)
            assert occ <= NUNITS, f"LDS over-subscribed in window {w}: {occ}"
        pos = {}
        dead = set()
        def place(k):
            if k == len(items): return True
            w, u, sz, it = items[k]
            live = tuple(sorted((pos[it2], sz2, u2) for (w2, u2, sz2, it2) in items[:k] if u2 >= w))
            if (k, live) in dead: return False
            busy = set()
            for (b, sz2, _) in live: busy |= set(range(b, b + sz2))
            cand = [b for b in range(0, NUNITS - sz + 1, 1 if sz == 1 else 2) if not (busy & set(range(b, b + sz)))]
            if sz == 1: cand.sort(key=lambda b: (0 if (b == NUNITS - 1 or (b ^ 1) in busy) else 1, -b))
            for b in cand[:3]:
                pos[it] = b
                if place(k + 1): return True
            dead.add((k, live))
            assert len(dead) < 200000, "LDS allocation search gave up"
            return False
        assert place(0), "LDS allocation failed"
        self.pos = {k: v * UNIT for k, v in pos.items()}

    def dma_item(self, it):
        k, i = it[0], int(it[1:]); b = self.pos[it]; L = []
        def ld(v, srd, so, imm):
            return Ins(f"buffer_load_dwordx4 v{v}, s[{srd}:{srd+3}], s{so} offen" + (f" offset:{imm}" if imm else "") + " lds", it)
        if k == "X":
            L.append(f"s_add_u32 m0, s{sM4}, {b}")
            for q in range(4): L.append(ld(self.vX[q], S_X, sCX + i, q * 1024))
        elif k == "B":
            L.append(f"s_add_u32 m0, s{sM1}, {b}"); L.append(ld(self.vB, S_BRE, sCX + i, 0))
            L.append(f"s_add_u32 m0, s{sM1}, {b + 4096}"); L.append(ld(self.vB, S_BIM, sCX + i, 0))
        elif k == "W":
            if i == 7:
                for v in vWG + vWU: L.append(f"v_add_u32 v{v}, 0x80, v{v}")
            L.append(f"s_add_u32 m0, s{sM2}, {b}")
            for q in range(2): L.append(ld(vWG[q], S_WG, sCW + i % 7, q * 1024))
            L.append(f"s_add_u32 m0, s{sM2}, {b + 8192}")
            for q in range(2): L.append(ld(vWU[q], S_WU, sCW + i % 7, q * 1024))
        elif k == "D":
            L.append(f"s_mul_i32 s{sTMP[0]}, s{sJ + i}, {128 * 896}")
            L.append(f"s_add_u32 m0, s{sM4}, {b}")
            for q in range(4): L.append(ld(vD[q], S_WD, sTMP[0], q * 1024))
        elif k == "C":
            L.append(f"s_lshl_b32 s{sTMP[1]}, s{sJ + i}, 7")
            L.append(f"s_add_u32 m0, s{sM2}, {b}")
            for q in range(2): L.append(ld(vC[q], S_C, sTMP[1], q * 1024))
        return L

    W2A = [224, 0, 24, 48, 72, 96, 120]
    def move_item(self, j):
        a = self.W2A[j]; bd = self.pos[f"D{j}"]; bc = self.pos[f"C{j}"]; L = []
        for kq in range(2):
            for dt in range(2):
                for rd in range(2):
                    r = a + 8 * kq + 4 * dt + 2 * rd
                    L.append(("ds", f"ds_read_b64_tr_b16 a[{r}:{r+1}]", vWD[dt], bd + kq * 2048 + rd * 1024))
        for dt in range(2):
            r = a + 16 + 4 * dt
            L.append(("ds", f"ds_read_b128 a[{r}:{r+3}]", vCA, bc + dt * 4096))
        return L

    def emit(self, x):
        p = self.p
        if callable(x): x()
        elif isinstance(x, tuple):
            if x[0] == "ds":
                off = self.lds(x[2], x[3]); p(f"{x[1]}, v{x[2]} offset:{off}")
            elif x[0] == "dsw":
                off = self.lds(x[2], x[4]); p(f"{x[1]} v{x[2]}, {x[3]} offset:{off}")
        else: p(x)

    def new_slots(self): self.slots = []
    def add_slot(self, mfma, pre=None):
        self.slots.append(dict(pre=list(pre or []), mfma=mfma, post=[], fill=[])); return len(self.slots) - 1
    def spread(self, a, b, items):
        n = len(items); m = b - a
        for k, it in enumerate(items): self.slots[a + (k * m) // n]["fill"].append(it)
    def run_slots(self):
        for s in self.slots:
            for x in s["pre"]: self.emit(x)
            if s["mfma"]: self.p(s["mfma"])
            for x in s["post"] + s["fill"]: self.emit(x)

    def prologue(self):
        p, o = self.p, self.o
        p(f"s_load_dwordx16 s[{sKA}:{sKA+15}], s[0:1], 0")
        p(f"s_load_dwordx16 s[{sKA+16}:{sKA+31}], s[0:1], 64")
        p(f"s_load_dwordx2 s[{sKA+32}:{sKA+33}], s[0:1], 128")
        if o["stamps"]: p.raw("s_memrealtime s[60:61]")
        p("s_cmp_ge_u32 s2, 256"); p("s_cbranch_scc1 L_end")
        p("v_lshrrev_b32 v1, 6, v0")
        p("s_and_b32 s3, s2, 7")
        p(f"v_readfirstlane_b32 s{sW}, v1")
        p(f"s_lshr_b32 s{sTMP[0]}, s2, 3")
        p(f"s_cmp_lt_u32 s{sTMP[0]}, 4"); p("s_cbranch_scc1 L_helper")
        p(f"s_sub_u32 s{sTMP[0]}, s{sTMP[0]}, 4")
        p(f"s_mul_i32 s{sTMP[1]}, s{sTMP[0]}, 9363"); p(f"s_lshr_b32 s{sTMP[1]}, s{sTMP[1]}, 16")
        p(f"s_mul_i32 s{sN}, s{sTMP[1]}, 7"); p(f"s_sub_u32 s{sN}, s{sTMP[0]}, s{sN}")
        p(f"s_and_b32 s{sKH}, s3, 1")
        p(f"s_lshr_b32 s{sR}, s3, 1"); p(f"s_lshl_b32 s{sR}, s{sR}, 2"); p(f"s_add_u32 s{sR}, s{sR}, s{sTMP[1]}")
        p(f"s_mul_i32 s{sS}, s{sKH}, 7"); p(f"s_add_u32 s{sS}, s{sS}, s{sN}")
        p(f"s_lshl_b32 s{sM1}, s{sW}, 10"); p(f"s_lshl_b32 s{sM2}, s{sW}, 11"); p(f"s_lshl_b32 s{sM4}, s{sW}, 12")
        def rho(dst, a, c):
            p(f"s_mul_i32 s{dst}, s{sN}, {a}"); p(f"s_mul_i32 s{sTMP[2]}, s{sTMP[1]}, {c}"); p(f"s_add_u32 s{dst}, s{dst}, s{sTMP[2]}")
            p(f"s_mul_i32 s{sTMP[2]}, s{dst}, 9363"); p(f"s_lshr_b32 s{sTMP[2]}, s{sTMP[2]}, 16"); p(f"s_mul_i32 s{sTMP[2]}, s{sTMP[2]}, 7")
            p(f"s_sub_u32 s{dst}, s{dst}, s{sTMP[2]}")
        if o["stamps"]: p("s_mov_b32 s43, s2")
        rho(3, o["a1"], o["c1"]); rho(2, o["a2"], o["c2"])
        p(f"s_lshl_b32 s{sCX}, s3, 7")
        p(f"s_add_u32 s{sCX+1}, s{sCX}, 128"); p(f"s_cmp_eq_u32 s{sCX+1}, 896"); p(f"s_cselect_b32 s{sCX+1}, 0, s{sCX+1}")
        t = ACB + 16
        self.vX = [t, t + 1, t + 2, t + 3]; self.vB = t + 4
        vl, vrow, vc8, vq, vt, vu = t + 20, t + 21, t + 22, t + 23, t + 24, t + 25
        self.tl = (vl, vrow, vc8, vq, vt, vu)
        p(f"v_and_b32 v{vl}, 63, v0")
        p(f"v_lshrrev_b32 v{vrow}, 3, v{vl}"); p(f"v_and_b32 v{vc8}, 7, v{vl}"); p(f"v_lshrrev_b32 v{vq}, 4, v{vl}")
        p(f"s_lshl_b32 s{sTMP[0]}, s{sR}, 2"); p(f"s_add_u32 s{sTMP[0]}, s{sTMP[0]}, s{sW}"); p(f"s_mul_i32 s{sTMP[0]}, s{sTMP[0]}, {32*896}")
        p(f"v_mul_u32_u24 v{vt}, 896, v{vrow}")
        p(f"v_xor_b32 v{vu}, v{vc8}, v{vq}")
        p(f"v_lshl_add_u32 v{self.vX[0]}, v{vu}, 4, v{vt}")
        p(f"v_xor_b32 v{self.vX[1]}, 64, v{self.vX[0]}")
        p(f"v_mov_b32 v{vC[0]}, v{self.vX[0]}"); p(f"v_mov_b32 v{vC[1]}, v{self.vX[1]}")
        p(f"s_and_b32 s{sTMP[2]}, s{sW}, 1"); p(f"s_lshl_b32 s{sTMP[2]}, s{sTMP[2]}, 6")
        p(f"v_xor_b32 v{self.vB}, s{sTMP[2]}, v{self.vX[0]}")
        p(f"s_lshl_b32 s{sTMP[2]}, s{sS}, 2"); p(f"s_add_u32 s{sTMP[2]}, s{sTMP[2]}, s{sW}"); p(f"s_mul_i32 s{sTMP[2]}, s{sTMP[2]}, {8*896}")
        p(f"v_add_u32 v{self.vB}, s{sTMP[2]}, v{self.vB}")
        p(f"v_add_u32 v{self.vX[0]}, s{sTMP[0]}, v{self.vX[0]}")
        p(f"v_add_u32 v{self.vX[1]}, s{sTMP[0]}, v{self.vX[1]}")
        p(f"v_add_u32 v{self.vX[2]}, {16*896 - 2048}, v{self.vX[0]}")
        p(f"v_add_u32 v{self.vX[3]}, {24*896 - 3072}, v{self.vX[1]}")
        p(f"v_add_u32 v{self.vX[1]}, {8*896 - 1024}, v{self.vX[1]}")
        p(f"v_lshlrev_b32 v{vLANE16}, 4, v{vl}")
        p.wait_smem()
        if o["stamps"]:
            p("v_mov_b32 v0, 0"); p.raw("v_writelane_b32 v0, s60, 0"); p.raw("v_writelane_b32 v0, s43, 63"); self.nstamp = 1
        K = lambda i: sKA + 2 * i
        self.srd(S_X, K(0), 2048 * 896); self.srd(S_BRE, K(3), 448 * 896); self.srd(S_BIM, K(4), 448 * 896)
        pro = self.issue[-1]
        for it in pro[:2]:
            for x in self.dma_item(it): self.emit(x)
        self.srd(S_AUX, K(13), 896)
        p(f"s_mov_b32 m0, {L_GW}")
        p(f"buffer_load_dwordx4 v{vLANE16}, s[{S_AUX}:{S_AUX+3}], 0 offen lds", "GW")
        vn, vtau, vhi = t + 26, t + 27, t + 28
        self.tn = (vn, vtau, vhi)
        p(f"v_and_b32 v{vn}, 31, v{vl}"); p(f"v_lshrrev_b32 v{vhi}, 5, v{vl}")
        p(f"v_and_b32 v{vtau}, 3, v{vn}")
        p(f"v_lshrrev_b32 v{vt}, 3, v{vn}"); p(f"v_lshl_add_u32 v{vtau}, v{vt}, 2, v{vtau}")
        p(f"v_and_b32 v{vt}, 4, v{vn}"); p(f"v_lshl_add_u32 v{vtau}, v{vt}, 2, v{vtau}")
        p(f"s_lshl_b32 s{sTMP[0]}, s{sS}, 6")
        p(f"v_lshl_add_u32 v{vt}, v{vtau}, 1, s{sTMP[0]}")
        self.vPar = [t + 30, t + 31, t + 32]
        p(f"global_load_ushort v{self.vPar[0]}, v{vt}, s[{K(1)}:{K(1)+1}]")
        p(f"global_load_ushort v{self.vPar[1]}, v{vt}, s[{K(2)}:{K(2)+1}]")
        p(f"global_load_ushort v{self.vPar[2]}, v{vt}, s[{K(7)}:{K(7)+1}]")
        for it in pro[2:]:
            for x in self.dma_item(it): self.emit(x)
        self.srd(S_WG, K(10), 448 * 3584); self.srd(S_WU, K(11), 448 * 3584); self.srd(S_WD, K(12), 1792 * 896)
        p(f"s_cmp_eq_u32 s{sKH}, 0")
        p(f"s_cselect_b32 s{S_C}, s{K(5)}, s{K(6)}"); p(f"s_cselect_b32 s{S_C+1}, s{K(5)+1}, s{K(6)+1}")
        p(f"s_mov_b32 s{S_C+2}, {448*896:#x}"); p(f"s_mov_b32 s{S_C+3}, 0x20000")
        self.srd(S_WS, K(16), WS_SIZE); self.srd(S_OUT, K(14), 2048 * 448 * 4)
        p(f"s_mov_b64 s[0:1], s[{K(8)}:{K(8)+1}]")
        p(f"s_mov_b64 s[{sDBG}:{sDBG+1}], s[{K(15)}:{K(15)+1}]")
        p(f"s_mov_b64 s[{sDSK}:{sDSK+1}], s[0:1]")
        for i in range(2, 7):
            p(f"s_add_u32 s{sCX+i}, s{sCX+i-1}, 128"); p(f"s_cmp_eq_u32 s{sCX+i}, 896"); p(f"s_cselect_b32 s{sCX+i}, 0, s{sCX+i}")
        self.vXA = [t + 6 + j for j in range(4)]; self.vXB = [t + 10 + j for j in range(4)]; self.vBJ = [t + 14 + j for j in range(4)]
        self.vGW, self.vGW0 = t + 18, t + 19
        p(f"s_and_b32 s{sT0}, s{sW}, 1"); p(f"s_lshl_b32 s{sT0}, s{sT0}, 1"); p(f"s_lshr_b32 s{sTMP[0]}, s{sW}, 1"); p(f"s_add_u32 s{sT0}, s{sT0}, s{sTMP[0]}")
        p(f"v_lshrrev_b32 v{vt}, 1, v{vtau}"); p(f"v_and_b32 v{vt}, 7, v{vt}"); p(f"v_xor_b32 v{vt}, v{vt}, v{vhi}")
        p(f"v_lshlrev_b32 v{vt}, 4, v{vt}"); p(f"v_lshl_add_u32 v{self.vBJ[0]}, v{vtau}, 7, v{vt}")
        p(f"s_lshl_b32 s{sTMP[0]}, s{sT0}, 12")
        for j in range(1, 4): p(f"v_xor_b32 v{self.vBJ[j]}, {32*j}, v{self.vBJ[0]}")
        for j in range(4):
            p(f"v_add_u32 v{self.vXA[j]}, s{sTMP[0]}, v{self.vBJ[j]}"); p(f"v_xor_b32 v{self.vXB[j]}, 0x1000, v{self.vXA[j]}")
        p(f"v_lshlrev_b32 v{self.vGW0}, 4, v{vhi}"); p(f"v_add_u32 v{self.vGW0}, {L_GW}, v{self.vGW0}")
        p(f"v_mov_b32 v{TMP}, 0"); p(f"v_mov_b32 v{TMP+1}, 0")
        p(f"v_lshlrev_b32 v{vt}, 3, v{vl}"); p(f"s_lshl_b32 s{sTMP[0]}, s{sW}, 9"); p(f"s_add_u32 s{sTMP[0]}, s{sTMP[0]}, {L_E}")
        p(f"v_add_u32 v{vt}, s{sTMP[0]}, v{vt}")
        p(f"ds_write_b64 v{vt}, v[{TMP}:{TMP+1}]")

    def setup_fillers(self):
        vl, vrow, vc8, vq, vt, vu = self.tl; vn, vtau, vhi = self.tn
        a = []
        A = a.append
        T0, T1, T2 = sTMP
        for i in range(7): A(f"s_mul_i32 s{sCW+i}, s{sCX+i}, {64*3584//128}")
        A(f"v_and_b32 v{vt}, 1, v{vq}"); A(f"v_lshlrev_b32 v{vt}, 1, v{vt}"); A(f"v_xor_b32 v{vt}, v{vt}, v{vc8}")
        A(f"v_mul_u32_u24 v{vu}, 3584, v{vrow}"); A(f"v_lshl_add_u32 v{vWG[0]}, v{vt}, 4, v{vu}")
        A(f"s_mul_i32 s{T2}, s{sW}, {16*3584}"); A(f"v_add_u32 v{vWG[0]}, s{T2}, v{vWG[0]}")
        A(f"s_lshl_b32 s{T2}, s{sS}, 8"); A(f"v_add_u32 v{vWG[0]}, s{T2}, v{vWG[0]}")
        A(f"v_xor_b32 v{vWU[0]}, 64, v{vWG[0]}")
        A(f"v_add_u32 v{vWG[1]}, {8*3584 - 1024}, v{vWG[0]}"); A(f"v_add_u32 v{vWU[1]}, {8*3584 - 1024}, v{vWU[0]}")
        r4, c4, g1, b0 = TMP + 2, TMP + 3, TMP + 4, TMP + 5
        A(f"v_bfe_u32 v{r4}, v{vl}, 2, 2"); A(f"v_and_b32 v{c4}, 3, v{vl}"); A(f"v_and_b32 v{b0}, 1, v{vq}")
        A(f"v_lshrrev_b32 v{g1}, 1, v{r4}")
        A(f"v_lshl_add_u32 v{vt}, v{b0}, 1, v{g1}")
        A(f"s_and_b32 s{T2}, s{sW}, 2"); A(f"v_xor_b32 v{vt}, s{T2}, v{vt}")
        A(f"v_lshlrev_b32 v{vt}, 5, v{vt}"); A(f"v_lshl_add_u32 v{vt}, v{c4}, 3, v{vt}")
        A(f"v_lshl_add_u32 v{vu}, v{vhi}, 3, v{r4}"); A(f"v_lshl_add_u32 v{vt}, v{vu}, 7, v{vt}")
        A(f"v_lshl_add_u32 v{vWT[0]}, v{b0}, 13, v{vt}"); A(f"v_xor_b32 v{vWT[1]}, 32, v{vWT[0]}")
        A(f"v_lshl_add_u32 v{vt}, v{g1}, 1, v{b0}"); A(f"v_lshlrev_b32 v{vt}, 5, v{vt}"); A(f"v_lshl_add_u32 v{vt}, v{c4}, 3, v{vt}")
        A(f"v_lshl_add_u32 v{vu}, v{vhi}, 2, v{r4}"); A(f"v_lshl_add_u32 v{vt}, v{vu}, 7, v{vt}")
        A(f"v_add_u32 v{vWD[0]}, s{sM4}, v{vt}"); A(f"v_xor_b32 v{vWD[1]}, 64, v{vWD[0]}")
        self.vTW, self.vTR = TMP + 30, TMP + 31
        A(f"v_lshlrev_b32 v{vt}, 5, v{vhi}"); A(f"v_lshl_add_u32 v{vt}, v{vtau}, 6, v{vt}"); A(f"v_add_u32 v{self.vTW}, s{sM4}, v{vt}")
        A(f"v_and_b32 v{vt}, 1, v{c4}"); A(f"v_lshlrev_b32 v{vt}, 5, v{vt}"); A(f"v_lshl_add_u32 v{vt}, v{b0}, 4, v{vt}")
        A(f"v_lshrrev_b32 v{vu}, 1, v{c4}"); A(f"v_lshl_add_u32 v{vt}, v{vu}, 3, v{vt}")
        A(f"v_lshl_add_u32 v{vu}, v{vhi}, 3, v{r4}"); A(f"v_lshl_add_u32 v{vt}, v{vu}, 6, v{vt}"); A(f"v_add_u32 v{self.vTR}, s{sM4}, v{vt}")
        A(f"v_bfe_u32 v{vt}, v{vn}, 1, 3"); A(f"s_lshl_b32 s{T2}, s{sW}, 1"); A(f"v_xor_b32 v{vt}, v{vt}, v{vhi}"); A(f"v_xor_b32 v{vt}, s{T2}, v{vt}")
        A(f"v_lshlrev_b32 v{vt}, 4, v{vt}"); A(f"v_lshl_add_u32 v{vCA}, v{vn}, 7, v{vt}")
        A(f"s_lshl_b32 s{T2}, s{sN}, 2"); A(f"s_add_u32 s{T2}, s{T2}, s{sW}"); A(f"s_mul_i32 s{T2}, s{T2}, {16*896}")
        A(f"v_add_u32 v{vC[0]}, s{T2}, v{vC[0]}"); A(f"s_add_u32 s{T2}, s{T2}, {8*896 - 1024}"); A(f"v_add_u32 v{vC[1]}, s{T2}, v{vC[1]}")
        A(f"v_lshlrev_b32 v{vt}, 2, v{b0}"); A(f"v_xor_b32 v{vt}, v{vt}, v{vc8}"); A(f"v_mul_u32_u24 v{vu}, 896, v{vrow}")
        A(f"v_lshl_add_u32 v{vD[0]}, v{vt}, 4, v{vu}")
        A(f"s_mul_i32 s{T2}, s{sKH}, 56"); A(f"s_add_u32 s{T2}, s{T2}, s{sW}"); A(f"s_mul_i32 s{T2}, s{T2}, {16*896}")
        A(f"v_add_u32 v{vD[0]}, s{T2}, v{vD[0]}"); A(f"s_lshl_b32 s{T2}, s{sN}, 7"); A(f"v_add_u32 v{vD[0]}, s{T2}, v{vD[0]}")
        A(f"v_add_u32 v{vD[1]}, {8*896 - 1024}, v{vD[0]}"); A(f"v_add_u32 v{vD[2]}, {64*896 - 2048}, v{vD[0]}"); A(f"v_add_u32 v{vD[3]}, {72*896 - 3072}, v{vD[0]}")
        A(f"s_mov_b32 s{sJ}, s2")
        for i in range(1, 7):
            A(lambda i=i: [self.p(x) for x in (f"s_add_u32 s{sJ+i}, s{sJ+i-1}, 1", f"s_cmp_eq_u32 s{sJ+i}, 7", f"s_cselect_b32 s{sJ+i}, 0, s{sJ+i}")])
        vj = TMP + 6
        A(f"s_lshl_b32 s{T2}, s{sT0}, 1"); A(f"v_add_u32 v{vj}, s{T2}, v{vhi}")
        A(f"v_lshlrev_b32 v{vt}, 3, v{vn}"); A(f"v_lshl_add_u32 v{vE}, v{vj}, 8, v{vt}"); A(f"v_add_u32 v{vE}, {L_E}, v{vE}")
        self.base[vE] = L_E
        A(f"s_lshl_b32 s{T2}, s{sT0}, 7"); A(f"s_add_u32 s{T2}, s{T2}, {L_G}"); A(f"v_lshl_add_u32 v{vGA}, v{vtau}, 2, s{T2}")
        self.base[vGA] = L_G
        A(lambda: [self.p(x) for x in (f"v_cmp_eq_u32 vcc, 0, v{vl}", f"v_bfrev_b32 v{vt}, 1", f"v_cndmask_b32 v{vFLAG}, v{vt}, 0, vcc")])
        A(f"s_lshl_b32 s{T2}, s{sR}, 2"); A(f"s_add_u32 s{sH0}, s{T2}, s{sT0}"); A(f"s_xor_b32 s{sH1}, s{sH0}, 1")
        A(f"s_mul_i32 s{sH0}, s{sH0}, {168*1024}"); A(f"s_mul_i32 s{sH1}, s{sH1}, {168*1024}")
        A(f"s_lshl_b32 s{T2}, s{sS}, 11"); A(f"s_add_u32 s{sHS}, s{sH0}, s{T2}"); A(f"s_add_u32 s{sHS}, s{sHS}, {112*1024}")
        A(f"s_lshl_b32 s{T2}, s{sS}, 13"); A(f"s_add_u32 s{sH0}, s{sH0}, s{T2}"); A(f"s_add_u32 s{sH1}, s{sH1}, s{T2}")
        A(f"s_and_b32 s{T2}, s{sM1}, 2048"); A(f"s_add_u32 s{sH0}, s{sH0}, s{T2}"); A(f"s_add_u32 s{sH1}, s{sH1}, s{T2}")
        A(f"s_lshl_b32 s{sFS}, s{sS}, 8"); A(f"s_add_u32 s{sFS}, s{sFS}, {WS_FL}")
        A(f"s_lshl_b32 s{T2}, s{sR}, 8"); A(f"s_add_u32 s{sFH}, s{T2}, {WS_FL + 4096}")
        pr, pi, pd = self.vPar
        x0, x1, x2, x3, x4, x5 = [TMP + 8 + i for i in range(6)]
        A(f"v_lshlrev_b32 v{pr}, 16, v{pr}"); A(f"v_lshlrev_b32 v{pi}, 16, v{pi}"); A(f"v_lshlrev_b32 v{pd}, 16, v{pd}")
        A(f"v_mul_f32 v{pd}, 0x3fb8aa3b, v{pd}"); A(f"v_exp_f32 v{pd}, v{pd}")
        A(f"v_cvt_pk_bf16_f32 v{pd}, v{pd}, v{pd}"); A(f"v_lshlrev_b32 v{pd}, 16, v{pd}")
        A(f"v_mul_f32 v{x0}, v{pd}, v{pr}"); A(f"v_mul_f32 v{x1}, v{pd}, v{pi}")
        A(f"v_mul_f32 v{x0}, 0x3fb8aa3b, v{x0}"); A(f"v_exp_f32 v{x0}, v{x0}")
        A(f"v_mul_f32 v{x1}, 0.15915494, v{x1}"); A(f"v_rndne_f32 v{x2}, v{x1}"); A(f"v_sub_f32 v{x1}, v{x1}, v{x2}")
        A(f"v_cos_f32 v{x2}, v{x1}"); A(f"v_sin_f32 v{x3}, v{x1}")
        A(f"v_mul_f32 v{vLR}, v{x0}, v{x2}"); A(f"v_mul_f32 v{vLI}, v{x0}, v{x3}"); A(f"v_sub_f32 v{vNLI}, 0, v{vLI}")
        A(f"v_mul_f32 v{x0}, v{pr}, v{pr}"); A(f"v_fmac_f32 v{x0}, v{pi}, v{pi}"); A(f"v_rcp_f32 v{x0}, v{x0}")
        A(f"v_add_f32 v{x1}, -1.0, v{vLR}"); A(f"v_add_f32 v{x0}, v{x0}, v{x0}")
        A(f"v_mul_f32 v{x2}, v{x1}, v{pr}"); A(f"v_fmac_f32 v{x2}, v{vLI}, v{pi}")
        A(f"v_mul_f32 v{x3}, v{vLI}, v{pr}"); A(f"v_fma_f32 v{x3}, -v{x1}, v{pi}, v{x3}")
        A(f"v_mul_f32 v{vKR}, v{x2}, v{x0}"); A(f"v_mul_f32 v{vKI}, v{x3}, v{x0}"); A(f"v_sub_f32 v{vNKI}, 0, v{vKI}")
        a += self.csq(x0, x1, vLR, vLI) + self.csq(x2, x3, x0, x1) + self.csq(x0, x1, x2, x3) + self.csq(vMR, vMI, x0, x1)
        A(lambda: [self.p(x) for x in (f"v_and_b32 v{vt}, 1, v{vj}", f"v_cmp_eq_u32 vcc, 1, v{vt}",
                                        f"v_cndmask_b32 v{vJR}, 1.0, v{vMR}, vcc", f"v_cndmask_b32 v{vJI}, 0, v{vMI}, vcc")])
        a += self.csq(x0, x1, vMR, vMI) + self.cmul(x4, x5, vJR, vJI, x0, x1)
        A(lambda: [self.p(x) for x in (f"v_and_b32 v{vt}, 2, v{vj}", f"v_cmp_eq_u32 vcc, 2, v{vt}",
                                        f"v_cndmask_b32 v{vJR}, v{vJR}, v{x4}, vcc", f"v_cndmask_b32 v{vJI}, v{vJI}, v{x5}, vcc")])
        a += self.csq(x2, x3, x0, x1) + self.cmul(x4, x5, vJR, vJI, x2, x3)
        A(lambda: [self.p(x) for x in (f"v_and_b32 v{vt}, 4, v{vj}", f"v_cmp_eq_u32 vcc, 4, v{vt}",
                                        f"v_cndmask_b32 v{vJR}, v{vJR}, v{x4}, vcc", f"v_cndmask_b32 v{vJI}, v{vJI}, v{x5}, vcc")])
        a += self.csq(vNR, vNI, x2, x3)
        a += self.csq(x0, x1, vNR, vNI) + self.csq(x2, x3, x0, x1) + self.csq(vN8R, vN8I, x2, x3)
        self.vSst, self.vSld, self.vFSo, self.vL4 = TMP + 26, TMP + 27, TMP + 28, TMP + 29
        A(lambda: [self.p(x) for x in (f"v_cmp_eq_u32 vcc, 7, v{vj}", f"v_bfrev_b32 v{vt}, 1", f"v_lshlrev_b32 v{vu}, 3, v{vn}",
                                        f"v_cndmask_b32 v{self.vSst}, v{vt}, v{vu}, vcc",
                                        f"v_cmp_eq_u32 vcc, 0, v{self.vSst}", f"v_cndmask_b32 v{self.vFSo}, v{vt}, 0, vcc")])
        A(f"s_sub_u32 s{T2}, s{sR}, 8"); A(f"s_lshl_b32 s{T2}, s{T2}, 8"); A(f"v_lshlrev_b32 v{vt}, 11, v{vhi}")
        A(f"v_sub_u32 v{self.vSld}, v{vu}, v{vt}"); A(f"v_add_u32 v{self.vSld}, s{T2}, v{self.vSld}")
        A(f"v_lshlrev_b32 v{self.vL4}, 2, v{vl}")
        A(lambda: [self.p(x) for x in (f"s_lshl_b32 s{T2}, s{sS}, 12", f"s_add_u32 s{T2}, s{T2}, {WS_S}",
                                        f"s_add_u32 s{S_AUX}, s{S_WS}, s{T2}", f"s_addc_u32 s{S_AUX+1}, s{S_WS+1}, 0",
                                        f"s_mov_b32 s{S_AUX+2}, 4096", f"s_mov_b32 s{S_AUX+3}, 0x20000")])
        return a

    def XR(self, pos, j, lt): return 32 * pos + 8 * j + 4 * lt

    def mlp_epilogue(self, acc, q, pk=False):
        L = []
        for t in range(2):
            for lt in range(2):
                a = acc + 32 * t + 16 * lt
                for j in range(8): L.append(f"v_mul_f32 v{a+j}, v{vOM[lt]}, v{a+j}")
                for j in range(8): L.append(f"v_mul_f32 v{a+j}, v{a+j}, v{a+8+j}")
                for j in range(4): L.append(f"v_cvt_pk_bf16_f32 v{a+8+j}, v{a+2*j}, v{a+2*j+1}")
                L.append(Ins(f"buffer_store_dwordx4 v[{a+8}:{a+11}], v{vLANE16}, s[{S_WS}:{S_WS+3}], s{(sH0, sH1)[lt]} offen" + (" offset:1024" if t else "") + " sc1", f"H{q}"))
        return L

    def flag(self, val, voff, soff, tags):
        def f():
            self.p(f"v_mov_b32 v{vVAL}, {val}")
            self.p.wait_tags(vm_tags=tags)
            self.p(f"buffer_store_dword v{vVAL}, v{voff}, s[{S_WS}:{S_WS+3}], s{soff} offen sc1")
        return f

    def phase1(self):
        p, o = self.p, self.o
        self.new_slots()
        first = {}
        def reads(c, j):
            k = (4 * c + j) & 1
            if c < 7:
                fb = FB + 12 * k; bx = self.pos[f"X{c}"]; bb = self.pos[f"B{c}"]
                L = []
                if j == 0: L.append(f"v_add_u32 v{self.vGW}, s{sCX+c}, v{self.vGW0}")
                x0, x1 = self.XR(c, j, 0), self.XR(c, j, 1)
                L += [("ds", f"ds_read_b128 a[{x0}:{x0+3}]", self.vXA[j], bx), ("ds", f"ds_read_b128 v[{fb}:{fb+3}]", self.vBJ[j], bb),
                      ("ds", f"ds_read_b128 v[{fb+4}:{fb+7}]", self.vBJ[j], bb + 4096), ("ds", f"ds_read_b128 v[{fb+8}:{fb+11}]", self.vGW, 32 * j),
                      ("ds", f"ds_read_b128 a[{x1}:{x1+3}]", self.vXB[j], bx)]
                return L
            fb = FB + 12 * k; b = self.pos[f"W{c-7}"]
            return [("ds", f"ds_read_b64_tr_b16 v[{fb+4*t+2*rd}:{fb+4*t+2*rd+1}]", vWT[t], b + j * 2048 + rd * 512) for t in range(2) for rd in range(2)]
        def barrier(c):
            tags = [it for it, u in self.use.items() if u == c] + (["GW"] if c == 0 else [])
            def f():
                p.wait_tags(vm_tags=tags, lg_all=True); p("s_barrier")
            return f
        ZA = ACB
        for c in range(21):
            for j in range(4):
                k = (4 * c + j) & 1; fb = FB + 12 * k
                pre = [barrier(c + 1)] if j == 3 else []
                if o["stamps"] and j == 0 and c in o.get("st1", (0, 1, 7, 14)): pre = pre + [self.stamp]
                if c < 7:
                    x0 = self.XR(c, j, 0); z = (c == 0 and j == 0)
                    ms = [f"v_mfma_f32_32x32x16_bf16 v[{ACS}:{ACS+15}], a[{x0}:{x0+3}], v[{fb}:{fb+3}], " + ("0" if z else f"v[{ACS}:{ACS+15}]"),
                          f"v_mfma_f32_32x32x16_bf16 v[{ACS+16}:{ACS+31}], a[{x0}:{x0+3}], v[{fb+4}:{fb+7}], " + ("0" if z else f"v[{ACS+16}:{ACS+31}]"),
                          f"v_mfma_f32_32x32x16_bf16 v[{ZA}:{ZA+15}], v[{fb+8}:{fb+11}], a[{x0}:{x0+3}], " + ("0" if z else f"v[{ZA}:{ZA+15}]")]
                else:
                    acc = ACA if c < 14 else ACB; pos = (c - 7) % 7; z = (pos == 0 and j == 0); ms = []
                    for t in range(2):
                        for lt in range(2):
                            a = acc + 32 * t + 16 * lt; x = self.XR(pos, j, lt)
                            ms.append(f"v_mfma_f32_32x32x16_bf16 v[{a}:{a+15}], v[{fb+4*t}:{fb+4*t+3}], a[{x}:{x+3}], " + ("0" if z else f"v[{a}:{a+15}]"))
                for m, t in enumerate(ms):
                    s = self.add_slot(t, pre if m == 0 else None)
                    if m == 0: first[(c, j)] = s
                nc, nj = (c, j + 1) if j < 3 else (c + 1, 0)
                if nc < 21:
                    R = reads(nc, nj); s0 = first[(c, j)]
                    h = (len(R) + 1) // 2
                    self.slots[s0]["post"] += R[:h]; self.slots[s0 + 1]["post"] += R[h:]
        nslot = len(self.slots)
        beta = lambda c: first[(c - 1, 3)] if c > 0 else 0
        wend = lambda c: beta(c + 1) if c < 21 else nslot
        self.beta = beta
        self.slots[0]["pre"] = [barrier(0)] + reads(0, 0) + self.slots[0]["pre"]
        for w in sorted(self.issue):
            if w < 0: continue
            L = []
            for it in self.issue[w]: L += self.dma_item(it)
            self.spread(beta(w), wend(w), L)
        for j, w in enumerate(self.move):
            if w <= 20: self.spread(beta(w) + 2, wend(w) - 3, self.move_item(j))
        self.spread(0, beta(5), self.setup_fillers())
        vl, vrow, vc8, vq, vt, vu = self.tl
        U = lambda i: ACS + i
        V = lambda i: ACS + 16 + i
        t0 = TMP
        G = [f"v_cvt_pk_bf16_f32 v{t0}, v{ZA}, v{ZA}", f"v_lshlrev_b32 v{t0}, 16, v{t0}", f"v_mul_f32 v{t0}, 0xbfb8aa3b, v{t0}",
             f"v_exp_f32 v{t0}, v{t0}", f"v_add_f32 v{t0}, 1.0, v{t0}", f"v_rcp_f32 v{t0}, v{t0}",
             f"v_cvt_pk_bf16_f32 v{t0}, v{t0}, v{t0}", f"v_lshlrev_b32 v{t0}, 16, v{t0}", f"v_sub_f32 v{t0+1}, 1.0, v{t0}",
             f"v_cvt_pk_bf16_f32 v{t0+1}, v{t0+1}, v{t0+1}", f"v_lshlrev_b32 v{vOM[0]}, 16, v{t0+1}",
             ("dsw", "ds_write_b32", vGA, f"v{t0}", L_G), ("dsw", "ds_write_b32", vGA, f"v{vOM[0]}", L_G + 512)]
        H1 = []; cur = (U(0), V(0)); pp = [(t0 + 2, t0 + 3), (t0 + 4, t0 + 5)]
        for i in range(1, 16):
            d = pp[i & 1]
            H1 += [f"v_fma_f32 v{d[0]}, v{vLR}, v{cur[0]}, v{U(i)}", f"v_fma_f32 v{d[1]}, v{vLR}, v{cur[1]}, v{V(i)}",
                   f"v_fmac_f32 v{d[0]}, v{vNLI}, v{cur[1]}", f"v_fmac_f32 v{d[1]}, v{vLI}, v{cur[0]}"]
            cur = d
        Eo = cur
        H1.append(("dsw", "ds_write_b64", vE, f"v[{Eo[0]}:{Eo[1]}]", L_E + 7 * 256))
        a0 = first[(7, 0)]
        self.spread(a0 + 1, beta(9) - 2, H1 + G)
        self.slots[beta(8)]["fill"].append(f"v_mov_b32 v{vVAL}, 0")
        self.slots[beta(8)]["fill"].append(f"global_load_dword v{vPOLL}, v{vVAL}, s[{sDBG}:{sDBG+1}] sc1")
        eb = ACB + 32
        P = [("ds", f"ds_read_b64 v[{eb+2*e}:{eb+2*e+1}]", vE, L_E + 256 * e) for e in range(7)]
        P.append(f"v_xor_b32 v{t0}, 128, v{vGA}")
        P.append(f"ds_read_b32 v{vOM[1]}, v{t0} offset:512")
        cur = (eb, eb + 1)
        for e in range(1, 7):
            d = (eb + 2 * e, eb + 2 * e + 1) if e < 6 else (vPR, vPI)
            P += self.cfma(d[0], d[1], vMR, vMI, cur[0], cur[1], eb + 2 * e, eb + 2 * e + 1); cur = d
        P += self.cfma(Eo[0], Eo[1], vMR, vMI, vPR, vPI, Eo[0], Eo[1])
        P.append(f"s_lshl_b32 s{sTMP[2]}, s{sR}, 8")
        P.append(Ins(f"buffer_store_dwordx2 v[{Eo[0]}:{Eo[1]}], v{self.vSst}, s[{S_AUX}:{S_AUX+3}], s{sTMP[2]} offen sc1", "SST"))
        self.spread(beta(9), beta(10) - 2, P)
        def gate_check():
            k = self.nlab; self.nlab += 1
            p(f"v_cmp_ne_u32 vcc, 0, v{vPOLL}"); p("s_cmp_lg_u64 vcc, 0"); p(f"s_cbranch_scc1 L_ok{k}")
            p(f"s_mov_b32 s{sSPIN}, 0"); p.label(f"L_spin{k}")
            p.raw(f"global_load_dword v{vPOLL}, v{vVAL}, s[{sDBG}:{sDBG+1}] sc1")
            p.raw(f"s_add_u32 s{sSPIN}, s{sSPIN}, 1"); p.raw(f"s_cmp_ge_u32 s{sSPIN}, {o['spin']}"); p.raw(f"s_cbranch_scc1 L_giveup{k}")
            p.raw("s_waitcnt vmcnt(0)"); p.raw(f"v_cmp_ne_u32 vcc, 0, v{vPOLL}"); p.raw("s_cmp_lg_u64 vcc, 0"); p.raw(f"s_cbranch_scc0 L_spin{k}")
            p.label(f"L_giveup{k}"); p.raw("s_waitcnt vmcnt(0)"); p.label(f"L_ok{k}")
        self.slots[beta(10)]["fill"].append(gate_check)
        KM = []
        for i in range(16):
            tt = t0 + (i & 1)
            KM += [f"v_mul_f32 v{tt}, v{vKI}, v{U(i)}", f"v_mul_f32 v{U(i)}, v{vKR}, v{U(i)}",
                   f"v_fmac_f32 v{U(i)}, v{vNKI}, v{V(i)}", f"v_fma_f32 v{V(i)}, v{vKR}, v{V(i)}, v{tt}"]
        self.spread(beta(10) + 1, beta(13), KM)
        wfs, wpoll = o.get("w_fs", 12), o.get("w_fspoll", 14)
        def fs_flag():
            p(f"s_lshl_b32 s{sTMP[2]}, s{sR}, 2"); p(f"s_add_u32 s{sTMP[2]}, s{sTMP[2]}, s{sFS}")
            self.flag(1, self.vFSo, sTMP[2], ["SST"])()
        self.slots[beta(wfs) - 6]["fill"].append(fs_flag)
        self.slots[beta(wpoll) - 8]["fill"].append(self.poll_issue(self.vL4, f"s{sFS}"))
        sb = TMP + 8
        SL = [lambda: [p(x) for x in (f"s_lshl_b32 s{sMASK}, 1, s{sR}", f"s_sub_u32 s{sMASK}, s{sMASK}, 1", f"s_mov_b32 s{sMASK+1}, 0")],
              self.poll_check(self.vL4, f"s{sFS}", 1)]
        for e in range(8):
            SL.append(f"buffer_load_dwordx2 v[{sb+2*e}:{sb+2*e+1}], v{self.vSld}, s[{S_AUX}:{S_AUX+3}], 0 offen sc1")
            if e < 7: SL.append(f"v_add_u32 v{self.vSld}, 0x100, v{self.vSld}")
        self.spread(beta(wpoll) + 4, beta(wpoll) + 12, SL)
        b0 = first[(14, 0)]
        EA = self.mlp_epilogue(ACA, 0) + [f"s_add_u32 s{sH0}, s{sH0}, 4096", f"s_add_u32 s{sH1}, s{sH1}, 4096"]
        self.spread(b0 + 2, beta(16), EA)
        def fh_addr():
            p(f"s_lshl_b32 s{sTMP[2]}, s{sS}, 2"); p(f"s_add_u32 s{sTMP[2]}, s{sTMP[2]}, s{sW}"); p(f"s_lshl_b32 s{sTMP[2]}, s{sTMP[2]}, 2")
            p(f"s_add_u32 s{sFP}, s{sFH}, s{sTMP[2]}")
        self.slots[beta(16)]["fill"].append(fh_addr)
        self.slots[beta(o.get("w_fa", 18)) - 6]["fill"].append(self.flag(1, vFLAG, sFP, ["H0"]))
        gb = ACA
        C2 = [f"v_and_b32 v{t0}, 32, v{self.vL4}", f"v_lshrrev_b32 v{t0}, 7, v{self.vL4}", f"v_lshlrev_b32 v{t0}, 6, v{t0}",
              f"s_lshl_b32 s{sTMP[2]}, s{sT0}, 7", f"s_add_u32 s{sTMP[2]}, s{sTMP[2]}, {L_G}", f"v_add_u32 v{t0}, s{sTMP[2]}, v{t0}"][1:]
        C2 += [f"ds_read_b128 v[{gb+4*e}:{gb+4*e+3}], v{t0} offset:{16*e}" for e in range(4)]
        cur = (sb, sb + 1)
        for e in range(1, 8):
            d = (sb + 2 * e, sb + 2 * e + 1)
            C2 += self.cfma(d[0], d[1], vNR, vNI, cur[0], cur[1], d[0], d[1]); cur = d
        C2 += [f"v_mov_b32 v{sb}, v{cur[0]}", f"v_mov_b32 v{sb+1}, v{cur[1]}",
               f"v_permlane32_swap_b32 v{cur[0]}, v{sb}", f"v_permlane32_swap_b32 v{cur[1]}, v{sb+1}"]
        C2 += self.cfma(cur[0], cur[1], vN8R, vN8I, sb, sb + 1, cur[0], cur[1])
        C2 += self.cfma(vPR, vPI, vJR, vJI, cur[0], cur[1], vPR, vPI)
        C2 += self.cmul(sb, sb + 1, vKR, vKI, vPR, vPI)
        cur = (sb, sb + 1)
        for i in range(16):
            C2 += [f"v_fmac_f32 v{U(i)}, v{vLR}, v{cur[0]}", f"v_fmac_f32 v{V(i)}, v{vLR}, v{cur[1]}",
                   f"v_fmac_f32 v{U(i)}, v{vNLI}, v{cur[1]}", f"v_fmac_f32 v{V(i)}, v{vLI}, v{cur[0]}"]
            cur = (U(i), V(i))
        pk = ACA + 16; fr = ACA + 32; tb = self.pos["TB"]
        for i in range(16): C2 += [f"v_mul_f32 v{U(i)}, v{gb+i}, v{U(i)}", f"v_mul_f32 v{V(i)}, v{gb+i}, v{V(i)}"]
        for i in range(8): C2.append(f"v_cvt_pk_bf16_f32 v{pk+i}, v{U(2*i)}, v{U(2*i+1)}")
        C2 += [("dsw", "ds_write_b128", self.vTW, f"v[{pk}:{pk+3}]", tb), ("dsw", "ds_write_b128", self.vTW, f"v[{pk+4}:{pk+7}]", tb + 16)]
        for i in range(8): C2.append(f"v_cvt_pk_bf16_f32 v{pk+8+i}, -v{V(2*i)}, -v{V(2*i+1)}")
        C2 += [("dsw", "ds_write_b128", self.vTW, f"v[{pk+8}:{pk+11}]", tb + 2048), ("dsw", "ds_write_b128", self.vTW, f"v[{pk+12}:{pk+15}]", tb + 2064)]
        for cpt in range(2):
            for q in range(2):
                for rd in range(2):
                    r = fr + 8 * cpt + 4 * q + 2 * rd
                    C2.append(("ds", f"ds_read_b64_tr_b16 v[{r}:{r+1}]", self.vTR, tb + cpt * 2048 + q * 1024 + rd * 256))
        C3 = []
        for cpt in range(2):
            for q in range(2):
                r = fr + 8 * cpt + 4 * q
                C3.append(Ins(f"buffer_store_dwordx4 v[{r}:{r+3}], v{vLANE16}, s[{S_WS}:{S_WS+3}], s{sHS} offen" + (" offset:1024" if q else "") + " sc1", "HS"))
            if cpt == 0: C3.append(f"s_add_u32 s{sHS}, s{sHS}, {28*1024}")
        w2a, w2b = o.get("w_scan", (16, 20))
        self.spread(beta(w2a) + 1, beta(w2b) - 4, C2)
        self.spread(beta(w2b) - 2, beta(w2b) + 2, C3)
        self.nslot1 = nslot

    def phase2(self):
        p, o = self.p, self.o
        RING = o["ring"]; ra = 144
        sJA, sJB, sJS = sCX, sCW, sJ
        vH = [5, 6, 7, 8]
        ACC = [64, 96, 128, 192]
        order = [("A", tp) for tp in range(4)] + [("S", 0), ("S", 1), ("B", 0), ("B", 1), ("S", 2), ("B", 2), ("S", 3), ("B", 3)]
        steps = [(part, tp, j) for (part, tp) in order for j in range(7)]
        T2 = sTMP[2]
        su = []
        for j in range(7):
            su += [f"s_lshl_b32 s{sJA+j}, s{sJ+j}, 13", f"s_add_u32 s{sJB+j}, s{sJA+j}, 4096"]
        su += [f"s_mul_i32 s{T2}, s{sKH}, {-28*1024 & 0xffffffff:#x}", f"s_add_u32 s{T2}, s{T2}, {112*1024}"]
        for j in range(7): su += [f"s_lshl_b32 s{sJS+j}, s{sJ+j}, 12", f"s_add_u32 s{sJS+j}, s{sJS+j}, s{T2}"]
        for tp in range(4):
            su += [f"s_lshl_b32 s{T2}, s{sKH}, 1", f"s_add_u32 s{T2}, s{T2}, {2+tp}", f"s_and_b32 s{T2}, s{T2}, 3",
                   f"s_lshl2_add_u32 s{T2}, s{sR}, s{T2}", f"s_mul_i32 s{T2}, s{T2}, {168*1024}", f"s_add_u32 s{T2}, s{T2}, s{sM1}",
                   f"v_add_u32 v{vH[tp]}, s{T2}, v{vLANE16}", f"s_mul_i32 s{T2}, s{sKH}, {56*1024}", f"v_add_u32 v{vH[tp]}, s{T2}, v{vH[tp]}"]
        lastdma = max(w for w in self.issue)
        assert lastdma <= 18
        self.spread(self.beta(19), self.beta(20), su)
        def hload(k):
            part, tp, j = steps[k]; r = ra + 4 * (k % RING)
            so = {"A": sJA, "B": sJB, "S": sJS}[part] + j
            return f"buffer_load_dwordx4 a[{r}:{r+3}], v{vH[tp]}, s[{S_WS}:{S_WS+3}], s{so} offen sc1"
        def maskhalf():
            p(f"s_mul_i32 s{T2}, s{sKH}, 28"); p(f"s_lshl_b64 s[{sMASK}:{sMASK+1}], 0xfffffff, s{T2}")
        def maskall():
            p(f"s_mov_b32 s{sMASK}, -1"); p(f"s_mov_b32 s{sMASK+1}, 0xffffff")
        n1 = self.nslot1
        self.slots[self.beta(20)]["fill"].append(self.poll_issue(self.vL4, f"s{sFH}"))
        early = o.get("early", 8)
        E = [maskhalf, self.poll_check(self.vL4, f"s{sFH}", 1)] + [hload(k) for k in range(early)]
        self.spread(n1 - 8, n1, E)
        EB = self.mlp_epilogue(ACB, 1)
        s = self.add_slot(None, ([self.stamp] if o["stamps"] else []) + EB + [self.flag(2, vFLAG, sFP, ["HS"])] + [hload(k) for k in range(early, RING)] + ([self.stamp] if o["stamps"] else []))
        first = {}
        started = set()
        for k, (part, tp, j) in enumerate(steps):
            r = ra + 4 * (k % RING); wa = self.W2A[j] + {"A": 0, "B": 8, "S": 16}[part]
            for dt in range(2):
                a = ACC[tp] + 16 * dt
                c = f"v[{a}:{a+15}]" if (tp, dt) in started else "0"
                started.add((tp, dt))
                s = self.add_slot(f"v_mfma_f32_32x32x16_bf16 v[{a}:{a+15}], a[{wa+4*dt}:{wa+4*dt+3}], a[{r}:{r+3}], {c}")
                if dt == 0:
                    first[k] = s
                    if o["stamps"] and o.get("st2") and k % 7 == 0 and k: self.slots[s]["pre"].append(self.stamp)
            if k + RING < len(steps): self.slots[s]["post"].append(hload(k + RING))
        nst = len(steps)
        last = {tp: max(k for k, st in enumerate(steps) if st[1] == tp) for tp in range(4)}
        self.slots[first[o.get("k_fb", 8)]]["fill"].append(self.flag(3, vFLAG, sFP, ["H1"]))
        for (k0, val, mask) in ((28, 2, maskall), (42, 3, maskhalf)):
            kc = k0 - RING
            self.slots[first[kc - o.get("poll_lead", 5)]]["fill"].append(self.poll_issue(self.vL4, f"s{sFH}"))
            self.slots[first[kc]]["fill"] += [mask, self.poll_check(self.vL4, f"s{sFH}", val)]
        vRW = [26, 27, 28, 29]; vRR = 30; vO = 31; vXo = 32; vPo = 33; SK = TMP; t = 40
        ln = self.vL4
        su = [f"v_lshrrev_b32 v{t}, 2, v{ln}",
              f"v_and_b32 v{t+1}, 7, v{t}", f"v_lshrrev_b32 v{t+2}, 5, v{t}", f"v_xor_b32 v{t+1}, v{t+1}, v{t+2}", f"v_lshlrev_b32 v{t+1}, 4, v{t+1}",
              f"v_subrev_u32 v{t+2}, {L_G}, v{vGA}", f"v_and_b32 v{t+2}, 0x7f, v{t+2}",
              f"v_lshl_add_u32 v{t+1}, v{t+2}, 6, v{t+1}", f"s_lshl_b32 s{T2}, s{sW}, 13", f"v_add_u32 v{vRW[0]}, s{T2}, v{t+1}"]
        su += [f"v_xor_b32 v{vRW[a]}, {32*a}, v{vRW[0]}" for a in range(1, 4)]
        su += [f"v_lshrrev_b32 v{t+1}, 4, v{t}", f"v_and_b32 v{t+2}, 15, v{t}",
               f"s_and_b32 s{T2}, s{sW}, 2", f"s_lshl_b32 s{T2}, s{T2}, 1", f"v_xor_b32 v{t+3}, v{t+2}, v{t+1}", f"v_xor_b32 v{t+3}, s{T2}, v{t+3}",
               f"v_lshlrev_b32 v{t+3}, 4, v{t+3}", f"v_lshl_add_u32 v{t+3}, v{t+1}, 8, v{t+3}", f"v_add_u32 v{vRR}, s{sM2}, v{t+3}",
               f"s_lshl_b32 s{T2}, s{sKH}, 3", f"s_add_u32 s{T2}, s{T2}, s{sW}", f"s_lshl_b32 s{T2}, s{T2}, 3", f"v_add_u32 v{t+1}, s{T2}, v{t+1}",
               f"v_lshlrev_b32 v{t+4}, 2, v{t+1}", f"v_add_u32 v{t+4}, {L_G}, v{t+4}",
               f"s_lshl_b32 s{T2}, s{sR}, 7", f"v_add_u32 v{t+1}, s{T2}, v{t+1}", f"v_mul_u32_u24 v{t+1}, 896, v{t+1}",
               f"s_lshl_b32 s{T2}, s{sN}, 7", f"v_lshl_add_u32 v{t+2}, v{t+2}, 3, s{T2}",
               f"v_add_u32 v{vXo}, v{t+1}, v{t+2}", f"v_lshlrev_b32 v{vO}, 1, v{vXo}",
               f"global_load_dwordx2 v[{t+6}:{t+7}], v{t+2}, s[{sDSK}:{sDSK+1}]"]
        for e in range(4):
            off = (32 * (e >> 1) + 4 * (e & 1))
            su += [f"s_mov_b32 s{T2}, {off*896}", f"buffer_load_dwordx2 v[{t+8+2*e}:{t+9+2*e}], v{vXo}, s[{S_X}:{S_X+3}], s{T2} offen",
                   f"ds_read_b32 v{t+16+e}, v{t+4} offset:{4*off}"]
        su += [f"s_mul_i32 s{sPs}, s{sR}, 14", f"s_add_u32 s{sPr}, s{sPs}, s{sN}", f"s_add_u32 s{sPs}, s{sPs}, s{sS}",
               f"s_mul_i32 s{T2}, s{sKH}, -7", f"s_add_u32 s{T2}, s{T2}, 7", f"s_add_u32 s{sPr}, s{sPr}, s{T2}",
               f"s_lshl_b32 s{sPs}, s{sPs}, 14", f"s_lshl_b32 s{sPr}, s{sPr}, 14",
               f"s_add_u32 s{sPs}, s{sPs}, {WS_PART}", f"s_add_u32 s{sPr}, s{sPr}, {WS_PART}",
               f"v_add_u32 v{vPo}, s{sM2}, v{vLANE16}",
               f"s_add_u32 s{T2}, s{T2}, s{sN}", f"s_lshl_b32 s{T2}, s{T2}, 2", f"s_add_u32 s{T2}, s{T2}, s{sW}", f"s_lshl_b32 s{T2}, s{T2}, 2",
               f"s_add_u32 s{sFPr}, s{sFH}, s{T2}", f"s_add_u32 s{sFPr}, s{sFPr}, 4096"]
        for r_ in vRW + [vRR]: self.base[r_] = 0
        self.spread(first[0], first[10], su)
        sk = [f"v_lshlrev_b32 v{t}, 16, v{t+6}", f"v_and_b32 v{t+1}, 0xffff0000, v{t+6}", f"v_lshlrev_b32 v{t+2}, 16, v{t+7}", f"v_and_b32 v{t+3}, 0xffff0000, v{t+7}"]
        for e in range(4):
            x = t + 8 + 2 * e; d = SK + 4 * e
            sk += [f"v_lshlrev_b32 v{d}, 16, v{x}", f"v_and_b32 v{d+1}, 0xffff0000, v{x}", f"v_lshlrev_b32 v{d+2}, 16, v{x+1}", f"v_and_b32 v{d+3}, 0xffff0000, v{x+1}"]
            sk += [f"v_mul_f32 v{d+i}, v{d+i}, v{t+i}" for i in range(4)]
            sk += [f"v_cvt_pk_bf16_f32 v{x}, v{d}, v{d+1}", f"v_cvt_pk_bf16_f32 v{x+1}, v{d+2}, v{d+3}"]
            sk += [f"v_lshlrev_b32 v{d}, 16, v{x}", f"v_and_b32 v{d+1}, 0xffff0000, v{x}", f"v_lshlrev_b32 v{d+2}, 16, v{x+1}", f"v_and_b32 v{d+3}, 0xffff0000, v{x+1}"]
            sk += [f"v_mul_f32 v{d+i}, v{d+i}, v{t+16+e}" for i in range(4)]
        self.spread(first[28], first[42], sk)
        RD = 160
        PT = TMP + 16
        PTs = [TMP + 16, 40]
        def red_write(tp):
            rb = self.pos[f"RB{tp&1}"]
            return [("dsw", "ds_write_b128", vRW[a], f"v[{ACC[tp]+16*dt+4*a}:{ACC[tp]+16*dt+4*a+3}]", rb + 128 * dt) for dt in range(2) for a in range(4)]
        def red_bar():
            p.wait_tags(lg_all=True); p("s_barrier")
        def red_read(tp):
            rb = self.pos[f"RB{tp&1}"]
            return [("ds", f"ds_read_b128 v[{RD+16*i+4*w}:{RD+16*i+4*w+3}]", vRR, rb + 8192 * w + 1024 * i) for i in range(2) for w in range(4)]
        def red_fin(tp):
            L = []
            for i in range(2):
                b = RD + 16 * i
                L += [f"v_add_f32 v{b+e}, v{b+e}, v{b+4+e}" for e in range(4)] + [f"v_add_f32 v{b+8+e}, v{b+8+e}, v{b+12+e}" for e in range(4)]
                L += [f"v_add_f32 v{b+e}, v{b+e}, v{b+8+e}" for e in range(4)]
                if tp < 2:
                    if tp == 1 and i == 0: L.append(f"s_add_u32 s{sPs}, s{sPs}, 8192")
                    L.append(Ins(f"buffer_store_dwordx4 v[{b}:{b+3}], v{vPo}, s[{S_WS}:{S_WS+3}], s{sPs} offen" + (" offset:1024" if i else "") + " sc1", "PS"))
                else:
                    L += [f"v_add_f32 v{SK+8*(tp-2)+4*i+e}, v{b+e}, v{SK+8*(tp-2)+4*i+e}" for e in range(4)]
            return L
        def out_store(tp):
            L = []
            for i in range(2):
                d = SK + 8 * (tp - 2) + 4 * i
                L += [f"v_add_f32 v{d+e}, v{d+e}, v{PTs[tp-2]+4*i+e}" for e in range(4)]
                L += [f"s_mov_b32 s{T2}, {(32*(tp-2) + 4*i)*1792}",
                      f"buffer_store_dwordx4 v[{d}:{d+3}], v{vO}, s[{S_OUT}:{S_OUT+3}], s{T2} offen {o['out_flags']}".rstrip()]
            return L
        for tp in range(3):
            k = last[tp] + 1
            self.spread(first[k] + 1, first[k + 2] + 1, red_write(tp))
            self.slots[first[k + 3]]["fill"] += [red_bar] + red_read(tp)
            self.spread(first[k + 4], first[k + 6] + 1, red_fin(tp))
        kf = last[1] + 1 + o.get("k_fp", 16)
        self.slots[first[kf]]["fill"] += [f"s_add_u32 s{sFP}, s{sFP}, 4096", self.flag(1, vFLAG, sFP, ["PS"])]
        self.slots[first[nst - 3]]["fill"].append(self.poll_issue(vFLAG, f"s{sFPr}"))
        def one(): p(f"s_mov_b64 s[{sMASK}:{sMASK+1}], 1")
        PL = [one, self.poll_check(vFLAG, f"s{sFPr}", 1)]
        for e in range(4):
            d = PTs[e >> 1] + 4 * (e & 1)
            if e == 2: PL.append(f"s_add_u32 s{sPr}, s{sPr}, 8192")
            PL.append(f"buffer_load_dwordx4 v[{d}:{d+3}], v{vPo}, s[{S_WS}:{S_WS+3}], s{sPr} offen" + (" offset:1024" if e & 1 else "") + " sc1")
        tail = ([self.stamp] if o["stamps"] else []) + red_write(3) + PL + [red_bar] + red_read(3) + red_fin(3) + out_store(2) + out_store(3)
        self.add_slot(None, tail)

    def finish(self):
        p, o = self.p, self.o
        if o["stamps"]:
            self.stamp()
            p.wait_tags(vm_all=True); self.stamp()
            p(f"v_readlane_b32 s{sTMP[0]}, v0, 63"); p(f"s_lshl_b32 s{sTMP[0]}, s{sTMP[0]}, 2"); p(f"s_add_u32 s{sTMP[0]}, s{sTMP[0]}, s{sW}")
            p(f"s_lshl_b32 s{sTMP[0]}, s{sTMP[0]}, 8"); p(f"s_add_u32 s{sTMP[0]}, s{sTMP[0]}, {WS_STAMP}")
            p(f"buffer_store_dword v0, v{self.vL4}, s[{S_WS}:{S_WS+3}], s{sTMP[0]} offen")
            if o.get("enc"):
                k, M = o["enc"]
                p(f"v_readlane_b32 s{sTMP[0]}, v0, 0"); p(f"v_readlane_b32 s{sTMP[1]}, v0, {k}")
                p(f"s_sub_u32 s{sTMP[1]}, s{sTMP[1]}, s{sTMP[0]}"); p(f"s_mul_i32 s{sTMP[1]}, s{sTMP[1]}, {M}"); p(f"s_add_u32 s{sTMP[1]}, s{sTMP[1]}, 5000")
                p(f"s_min_u32 s{sTMP[1]}, s{sTMP[1]}, 100000")
                p.label("L_enc")
                p.raw(f"s_memrealtime s[{sSTAMP}:{sSTAMP+1}]"); p.raw("s_waitcnt lgkmcnt(0)")
                p.raw(f"s_sub_u32 s{sSTAMP}, s{sSTAMP}, s{sTMP[0]}"); p.raw(f"s_cmp_lt_u32 s{sSTAMP}, s{sTMP[1]}"); p.raw("s_cbranch_scc1 L_enc")
            if o.get("dbgspan"):
                p(f"s_cmp_lg_u32 s{sW}, 0"); p("s_cbranch_scc1 L_nodbg")
                p(f"v_readlane_b32 s{sTMP[0]}, v0, 0"); p(f"s_not_b32 s{sTMP[0]}, s{sTMP[0]}"); p.raw(f"v_writelane_b32 v0, s{sTMP[0]}, 14")
                p("s_mov_b64 exec, 0x7fff")
                p(f"global_atomic_umax v{self.vL4}, v0, s[{sDBG}:{sDBG+1}] offset:4 sc1")
                p.label("L_nodbg")
        p("s_endpgm")

    def helper(self):
        p, o = self.p, self.o
        p.drained(); p.smem = set()
        K = lambda i: sKA + 2 * i
        p.label("L_helper")
        p(f"s_lshl_b32 s3, s3, 2"); p(f"s_add_u32 s3, s3, s{sTMP[0]}")
        p.wait_smem()
        self.srd(S_WS, K(16), WS_SIZE)
        p("s_cmp_lg_u32 s3, 0"); p("s_cbranch_scc1 L_noinit")
        for i in range(4): p(f"v_mov_b32 v{4+i}, 0")
        p("v_lshlrev_b32 v1, 4, v0")
        for i in range(3):
            p(f"s_mov_b32 s{sTMP[1]}, {WS_FL + 4096*i}")
            p(f"buffer_store_dwordx4 v[4:7], v1, s[{S_WS}:{S_WS+3}], s{sTMP[1]} offen sc1")
        p.raw("s_waitcnt vmcnt(0)"); p.drained()
        p("s_barrier")
        p("v_mov_b32 v5, 1")
        p("v_cmp_eq_u32 vcc, 0, v0"); p("s_and_saveexec_b64 s[50:51], vcc"); p("s_cbranch_execz L_nosig")
        p(f"global_store_dword v4, v5, s[{K(15)}:{K(15)+1}] sc1")
        p.label("L_nosig")
        p("s_mov_b64 exec, s[50:51]")
        p.label("L_noinit")
        if o["prefetch"]:
            p("s_getpc_b64 s[50:51]")
            p.label("L_pc")
            p(f"s_sub_u32 s50, s50, L_pc-{KN}_kernel"); p("s_subb_u32 s51, s51, 0")
            p("v_lshlrev_b32 v1, 7, v0"); p(f"v_min_u32 v2, L_pc-{KN}_kernel, v1")
            p("global_load_dword v8, v2, s[50:51]")
            self.srd(S_WG, K(10), 448 * 3584); self.srd(S_WU, K(11), 448 * 3584); self.srd(S_WD, K(12), 1792 * 896)
            self.srd(S_BRE, K(5), 448 * 896); self.srd(S_BIM, K(6), 448 * 896)
            p("v_cmp_gt_u32 vcc, 196, v0"); p("v_bfrev_b32 v3, 1")
            p("v_lshlrev_b32 v2, 8, v0"); p("v_cndmask_b32 v2, v3, v2, vcc")
            p("v_cndmask_b32 v1, v3, v1, vcc")
            p(f"s_mul_i32 s{sTMP[1]}, s3, {14*3584}")
            p(f"buffer_load_dword v9, v2, s[{S_WG}:{S_WG+3}], s{sTMP[1]} offen")
            p(f"buffer_load_dword v10, v2, s[{S_WU}:{S_WU+3}], s{sTMP[1]} offen")
            p(f"buffer_load_dword v11, v2, s[{S_WG}:{S_WG+3}], s{sTMP[1]} offen offset:128")
            p(f"buffer_load_dword v12, v2, s[{S_WU}:{S_WU+3}], s{sTMP[1]} offen offset:128")
            p(f"buffer_load_dword v13, v2, s[{S_WD}:{S_WD+3}], s{sTMP[1]} offen")
            p(f"buffer_load_dword v14, v2, s[{S_WD}:{S_WD+3}], s{sTMP[1]} offen offset:128")
            p(f"s_and_b32 s{sTMP[2]}, s3, 15"); p(f"s_mul_i32 s{sTMP[2]}, s{sTMP[2]}, {196*128}")
            p("s_cmp_lt_u32 s3, 16"); p("s_cbranch_scc1 L_cre")
            p(f"buffer_load_dword v15, v1, s[{S_BIM}:{S_BIM+3}], s{sTMP[2]} offen")
            p("s_branch L_cdone")
            p.label("L_cre")
            p(f"buffer_load_dword v16, v1, s[{S_BRE}:{S_BRE+3}], s{sTMP[2]} offen")
            p.label("L_cdone")
            p.raw("s_waitcnt vmcnt(0)")
        p.label("L_end")
        p("s_endpgm")

    def build(self):
        self.plan()
        self.prologue()
        self.phase1()
        self.phase2()
        self.run_slots()
        self.finish()
        self.helper()
        ins, added = pad_hazards(self.p.out)
        body = "\n".join(("" if i.kind == "label" else "    ") + i.text for i in ins)
        txt = HEADER + f"; @launch grid=(256,1,1) block=(256,1,1) lds={LDS_BYTES}\n"
        txt += '.amdgcn_target "amdgcn-amd-amdhsa--gfx950"\n.text\n'
        txt += f".globl {KN}_kernel\n.p2align 8\n.type {KN}_kernel,@function\n{KN}_kernel:\n" + body + "\n"
        txt += f""".section .rodata,"a"
.p2align 6
.amdhsa_kernel {KN}_kernel
  .amdhsa_next_free_vgpr 512
  .amdhsa_next_free_sgpr 102
  .amdhsa_accum_offset 256
  .amdhsa_group_segment_fixed_size 0
  .amdhsa_kernarg_size 136
  .amdhsa_user_sgpr_count 2
  .amdhsa_user_sgpr_kernarg_segment_ptr 1
  .amdhsa_system_sgpr_workgroup_id_x 1
  .amdhsa_float_denorm_mode_32 3
.end_amdhsa_kernel
"""
        self.stats = dict(n=len(ins), nops=added, waits=self.p.nwait)
        return txt

if __name__ == "__main__":
    out = sys.argv[1] if len(sys.argv) > 1 else "k.s"
    opts = json.loads(sys.argv[2]) if len(sys.argv) > 2 else {}
    g = Gen(**opts)
    open(out, "w").write(g.build())
    print(out, g.stats, {k: v // UNIT for k, v in g.pos.items()})
```

```python
import sys, json
from asmlib import Prog, Ins, pad_hazards

KN = "gated_mix__ssm_conv_s5__glu_gated_bilinear__prompt"
HEADER = open("cdna_kernels/%s.s.ref" % KN).read().split("; Override launch geometry")[0]

WS_H = 0
WS_PART = 12 << 20
WS_S = 16 << 20
WS_FL = 17 << 20
WS_STAMP = 200 << 20
WS_SIZE = 268435456
OOB = 0x80000000

UNIT = 8192
NUNITS = 19
PERS = NUNITS * UNIT
L_G = PERS
L_GW = PERS + 1024
L_E = PERS + 2048
LDS_BYTES = 160 * 1024

S_X, S_BRE, S_BIM, S_WG, S_WU, S_WD, S_C, S_WS, S_OUT, S_AUX = 4, 8, 12, 16, 20, 24, 28, 32, 36, 40
sW, sR, sS, sN, sKH, sT0 = 44, 45, 46, 47, 48, 49
sM1, sM2, sM4 = 50, 51, 52
sTMP = [53, 54, 55]
sCX = 56
sCW = 63
sJ = 70
sH0, sH1, sHS, sFH, sFP, sFPr, sFS, sPs, sPr = 77, 78, 79, 80, 81, 82, 83, 84, 85
sDSK = 86
sDBG = 88
sSPIN = 90
sMASK = 92
sSTAMP = 94
sKA = 68

vLANE16 = 1; vFLAG = 2; vWT = [3, 4]; vWG = [5, 6]; vWU = [7, 8]
vLR, vLI, vNLI = 9, 10, 11
vKR, vKI, vNKI = 12, 13, 14
vMR, vMI = 15, 16
vNR, vNI = 17, 18
vN8R, vN8I = 19, 20
vJR, vJI = 21, 22
vE = 23
vOM = [24, 25]
vD = [26, 27, 28, 29]; vC = [30, 31]; vWD = [32, 33]; vCA = 34
vPR, vPI = 36, 37
vVAL = 35; vPOLL = 38; vGA = 39
FB = 40
ACS = 64; ACA = 96; ACB = 160; TMP = 224

def tau(n): return 16 * ((n >> 2) & 1) + 4 * (n >> 3) + (n & 3)

class Gen:
    def __init__(self, **o):
        self.o = dict(a1=1, c1=0, a2=0, c2=0, ring=16, stamps=False, out_flags="", prefetch=True, spin=1 << 16)
        self.o.update(o)
        self.p = Prog()
        self.base = {}
        self.nstamp = 0
        self.nlab = 0

    def lds(self, reg, off):
        b = self.base.get(reg, 0)
        if not (0 <= off - b <= 65535):
            nb = (off // 32768) * 32768
            d = nb - b
            self.p(f"v_add_u32 v{reg}, {d & 0xffffffff:#x}, v{reg}")
            self.base[reg] = b = nb
        return off - b
    def stamp(self):
        if not self.o["stamps"]: return
        k = self.nstamp; self.nstamp += 1
        p = self.p
        p.raw(f"s_memrealtime s[{sSTAMP}:{sSTAMP+1}]")
        p.raw("s_waitcnt lgkmcnt(0)"); p.lg = []
        p.raw(f"v_writelane_b32 v0, s{sSTAMP}, {k}")
    def cmul(self, dr, di, ar, ai, br, bi):
        return [f"v_mul_f32 v{dr}, v{ar}, v{br}", f"v_mul_f32 v{di}, v{ar}, v{bi}",
                f"v_fma_f32 v{dr}, -v{ai}, v{bi}, v{dr}", f"v_fmac_f32 v{di}, v{ai}, v{br}"]
    def cfma(self, dr, di, ar, ai, br, bi, cr, ci):
        return [f"v_fma_f32 v{dr}, v{ar}, v{br}, v{cr}", f"v_fma_f32 v{di}, v{ar}, v{bi}, v{ci}",
                f"v_fma_f32 v{dr}, -v{ai}, v{bi}, v{dr}", f"v_fmac_f32 v{di}, v{ai}, v{br}"]
    def csq(self, dr, di, ar, ai):
        return [f"v_mul_f32 v{dr}, v{ar}, v{ar}", f"v_mul_f32 v{di}, v{ar}, v{ai}",
                f"v_fma_f32 v{dr}, -v{ai}, v{ai}, v{dr}", f"v_add_f32 v{di}, v{di}, v{di}"]
    def srd(self, s, ptr, size):
        p = self.p
        p(f"s_mov_b32 s{s}, s{ptr}"); p(f"s_mov_b32 s{s+1}, s{ptr+1}")
        p(f"s_mov_b32 s{s+2}, {size:#x}"); p(f"s_mov_b32 s{s+3}, 0x20000")

    def poll_issue(self, voff, soff, srd=S_WS):
        return f"buffer_load_dword v{vPOLL}, v{voff}, s[{srd}:{srd+3}], {soff} offen sc1"
    def poll_check(self, voff, soff, minval, srd=S_WS):
        def f():
            p = self.p; k = self.nlab; self.nlab += 1
            p(f"v_cmp_le_u32 vcc, {minval}, v{vPOLL}")
            p(f"s_andn2_b64 vcc, s[{sMASK}:{sMASK+1}], vcc")
            p(f"s_cbranch_scc0 L_ok{k}")
            p(f"s_mov_b32 s{sSPIN}, 0")
            p.label(f"L_spin{k}")
            p.raw(self.poll_issue(voff, soff, srd))
            p.raw(f"s_add_u32 s{sSPIN}, s{sSPIN}, 1")
            p.raw(f"s_cmp_ge_u32 s{sSPIN}, {self.o['spin']}")
            p.raw(f"s_cbranch_scc1 L_giveup{k}")
            p.raw("s_waitcnt vmcnt(0)")
            p.raw(f"v_cmp_le_u32 vcc, {minval}, v{vPOLL}")
            p.raw(f"s_andn2_b64 vcc, s[{sMASK}:{sMASK+1}], vcc")
            p.raw(f"s_cbranch_scc1 L_spin{k}")
            p.label(f"L_giveup{k}")
            p.raw("s_waitcnt vmcnt(0)")
            if self.o["stamps"]: p.raw(f"v_writelane_b32 v0, s{sSPIN}, {52+k}")
            p.label(f"L_ok{k}")
        return f

    def plan(self):
        o = self.o
        issue = o.get("issue") or {
            -1: ["X0", "B0", "X1", "B1"], 0: ["X2", "B2"], 1: ["X3", "B3"], 2: ["X4", "B4"], 3: ["X5", "B5"], 4: ["X6", "B6"],
            5: ["W0"], 6: ["W1"], 7: ["W2", "W3"], 8: ["W4", "W5"], 9: ["W6", "D0"], 10: ["W7", "C0"], 11: ["W8", "C1"],
            12: ["W9", "D1"], 13: ["W10", "D2"], 14: ["W11", "C2", "C3"], 15: ["W12", "D3"], 16: ["W13", "D4"], 17: ["C4", "D5", "C5"], 18: ["D6", "C6"]}
        issue = {int(k): v for k, v in issue.items()}
        move = o.get("move") or [12, 15, 16, 17, 19, 19, 20]
        self.issue, self.move = issue, move
        size = {"X": 2, "B": 1, "W": 2, "D": 2, "C": 1}
        items = []
        for w in sorted(issue):
            for it in issue[w]:
                k, i = it[0], int(it[1:])
                use = i if k in "XB" else (7 + i if k == "W" else move[i])
                assert w < use, it
                items.append((w, use, size[k], it))
        items.append((o.get("tb0", 17), 20, 2, "TB"))
        items.append((21, 99, 4, "RB0")); items.append((21, 99, 4, "RB1"))
        items.sort(key=lambda t: t[0])
        self.use = {it: u for (_, u, _, it) in items}
        for w in range(-1, 22):
            occ = sum(sz for (w2, u2, sz, it) in items if w2 <= w <= u2)
            assert occ <= NUNITS, f"LDS over-subscribed in window {w}: {occ}"
        pos = {}
        dead = set()
        def place(k):
            if k == len(items): return True
            w, u, sz, it = items[k]
            live = tuple(sorted((pos[it2], sz2, u2) for (w2, u2, sz2, it2) in items[:k] if u2 >= w))
            if (k, live) in dead: return False
            busy = set()
            for (b, sz2, _) in live: busy |= set(range(b, b + sz2))
            cand = [b for b in range(0, NUNITS - sz + 1, 1 if sz == 1 else 2) if not (busy & set(range(b, b + sz)))]
            if sz == 1: cand.sort(key=lambda b: (0 if (b == NUNITS - 1 or (b ^ 1) in busy) else 1, -b))
            for b in cand[:3]:
                pos[it] = b
                if place(k + 1): return True
            dead.add((k, live))
            assert len(dead) < 200000, "LDS allocation search gave up"
            return False
        assert place(0), "LDS allocation failed"
        self.pos = {k: v * UNIT for k, v in pos.items()}

    def dma_item(self, it):
        k, i = it[0], int(it[1:]); b = self.pos[it]; L = []
        def ld(v, srd, so, imm):
            return Ins(f"buffer_load_dwordx4 v{v}, s[{srd}:{srd+3}], s{so} offen" + (f" offset:{imm}" if imm else "") + " lds", it)
        if k == "X":
            L.append(f"s_add_u32 m0, s{sM4}, {b}")
            for q in range(4): L.append(ld(self.vX[q], S_X, sCX + i, q * 1024))
        elif k == "B":
            L.append(f"s_add_u32 m0, s{sM1}, {b}"); L.append(ld(self.vB, S_BRE, sCX + i, 0))
            L.append(f"s_add_u32 m0, s{sM1}, {b + 4096}"); L.append(ld(self.vB, S_BIM, sCX + i, 0))
        elif k == "W":
            if i == 7:
                for v in vWG + vWU: L.append(f"v_add_u32 v{v}, 0x80, v{v}")
            L.append(f"s_add_u32 m0, s{sM2}, {b}")
            for q in range(2): L.append(ld(vWG[q], S_WG, sCW + i % 7, q * 1024))
            L.append(f"s_add_u32 m0, s{sM2}, {b + 8192}")
            for q in range(2): L.append(ld(vWU[q], S_WU, sCW + i % 7, q * 1024))
        elif k == "D":
            L.append(f"s_mul_i32 s{sTMP[0]}, s{sJ + i}, {128 * 896}")
            L.append(f"s_add_u32 m0, s{sM4}, {b}")
            for q in range(4): L.append(ld(vD[q], S_WD, sTMP[0], q * 1024))
        elif k == "C":
            L.append(f"s_lshl_b32 s{sTMP[1]}, s{sJ + i}, 7")
            L.append(f"s_add_u32 m0, s{sM2}, {b}")
            for q in range(2): L.append(ld(vC[q], S_C, sTMP[1], q * 1024))
        return L

    W2A = [224, 0, 24, 48, 72, 96, 120]
    def move_item(self, j):
        a = self.W2A[j]; bd = self.pos[f"D{j}"]; bc = self.pos[f"C{j}"]; L = []
        for kq in range(2):
            for dt in range(2):
                for rd in range(2):
                    r = a + 8 * kq + 4 * dt + 2 * rd
                    L.append(("ds", f"ds_read_b64_tr_b16 a[{r}:{r+1}]", vWD[dt], bd + kq * 2048 + rd * 1024))
        for dt in range(2):
            r = a + 16 + 4 * dt
            L.append(("ds", f"ds_read_b128 a[{r}:{r+3}]", vCA, bc + dt * 4096))
        return L

    def emit(self, x):
        p = self.p
        if callable(x): x()
        elif isinstance(x, tuple):
            if x[0] == "ds":
                off = self.lds(x[2], x[3]); p(f"{x[1]}, v{x[2]} offset:{off}")
            elif x[0] == "dsw":
                off = self.lds(x[2], x[4]); p(f"{x[1]} v{x[2]}, {x[3]} offset:{off}")
        else: p(x)

    def new_slots(self): self.slots = []
    def add_slot(self, mfma, pre=None):
        self.slots.append(dict(pre=list(pre or []), mfma=mfma, post=[], fill=[])); return len(self.slots) - 1
    def spread(self, a, b, items):
        n = len(items); m = b - a
        for k, it in enumerate(items): self.slots[a + (k * m) // n]["fill"].append(it)
    def run_slots(self):
        for s in self.slots:
            for x in s["pre"]: self.emit(x)
            if s["mfma"]: self.p(s["mfma"])
            for x in s["post"] + s["fill"]: self.emit(x)

    def prologue(self):
        p, o = self.p, self.o
        p(f"s_load_dwordx16 s[{sKA}:{sKA+15}], s[0:1], 0")
        p(f"s_load_dwordx16 s[{sKA+16}:{sKA+31}], s[0:1], 64")
        p(f"s_load_dwordx2 s[{sKA+32}:{sKA+33}], s[0:1], 128")
        if o["stamps"]: p.raw("s_memrealtime s[60:61]")
        p("s_cmp_ge_u32 s2, 256"); p("s_cbranch_scc1 L_end")
        p("v_lshrrev_b32 v1, 6, v0")
        p("s_and_b32 s3, s2, 7")
        p(f"v_readfirstlane_b32 s{sW}, v1")
        p(f"s_lshr_b32 s{sTMP[0]}, s2, 3")
        p(f"s_cmp_lt_u32 s{sTMP[0]}, 4"); p("s_cbranch_scc1 L_helper")
        p(f"s_sub_u32 s{sTMP[0]}, s{sTMP[0]}, 4")
        p(f"s_mul_i32 s{sTMP[1]}, s{sTMP[0]}, 9363"); p(f"s_lshr_b32 s{sTMP[1]}, s{sTMP[1]}, 16")
        p(f"s_mul_i32 s{sN}, s{sTMP[1]}, 7"); p(f"s_sub_u32 s{sN}, s{sTMP[0]}, s{sN}")
        p(f"s_and_b32 s{sKH}, s3, 1")
        p(f"s_lshr_b32 s{sR}, s3, 1"); p(f"s_lshl_b32 s{sR}, s{sR}, 2"); p(f"s_add_u32 s{sR}, s{sR}, s{sTMP[1]}")
        p(f"s_mul_i32 s{sS}, s{sKH}, 7"); p(f"s_add_u32 s{sS}, s{sS}, s{sN}")
        p(f"s_lshl_b32 s{sM1}, s{sW}, 10"); p(f"s_lshl_b32 s{sM2}, s{sW}, 11"); p(f"s_lshl_b32 s{sM4}, s{sW}, 12")
        def rho(dst, a, c):
            p(f"s_mul_i32 s{dst}, s{sN}, {a}"); p(f"s_mul_i32 s{sTMP[2]}, s{sTMP[1]}, {c}"); p(f"s_add_u32 s{dst}, s{dst}, s{sTMP[2]}")
            p(f"s_mul_i32 s{sTMP[2]}, s{dst}, 9363"); p(f"s_lshr_b32 s{sTMP[2]}, s{sTMP[2]}, 16"); p(f"s_mul_i32 s{sTMP[2]}, s{sTMP[2]}, 7")
            p(f"s_sub_u32 s{dst}, s{dst}, s{sTMP[2]}")
        if o["stamps"]: p("s_mov_b32 s43, s2")
        rho(3, o["a1"], o["c1"]); rho(2, o["a2"], o["c2"])
        p(f"s_lshl_b32 s{sCX}, s3, 7")
        p(f"s_add_u32 s{sCX+1}, s{sCX}, 128"); p(f"s_cmp_eq_u32 s{sCX+1}, 896"); p(f"s_cselect_b32 s{sCX+1}, 0, s{sCX+1}")
        t = ACB + 16
        self.vX = [t, t + 1, t + 2, t + 3]; self.vB = t + 4
        vl, vrow, vc8, vq, vt, vu = t + 20, t + 21, t + 22, t + 23, t + 24, t + 25
        self.tl = (vl, vrow, vc8, vq, vt, vu)
        p(f"v_and_b32 v{vl}, 63, v0")
        p(f"v_lshrrev_b32 v{vrow}, 3, v{vl}"); p(f"v_and_b32 v{vc8}, 7, v{vl}"); p(f"v_lshrrev_b32 v{vq}, 4, v{vl}")
        p(f"s_lshl_b32 s{sTMP[0]}, s{sR}, 2"); p(f"s_add_u32 s{sTMP[0]}, s{sTMP[0]}, s{sW}"); p(f"s_mul_i32 s{sTMP[0]}, s{sTMP[0]}, {32*896}")
        p(f"v_mul_u32_u24 v{vt}, 896, v{vrow}")
        p(f"v_xor_b32 v{vu}, v{vc8}, v{vq}")
        p(f"v_lshl_add_u32 v{self.vX[0]}, v{vu}, 4, v{vt}")
        p(f"v_xor_b32 v{self.vX[1]}, 64, v{self.vX[0]}")
        p(f"v_mov_b32 v{vC[0]}, v{self.vX[0]}"); p(f"v_mov_b32 v{vC[1]}, v{self.vX[1]}")
        p(f"s_and_b32 s{sTMP[2]}, s{sW}, 1"); p(f"s_lshl_b32 s{sTMP[2]}, s{sTMP[2]}, 6")
        p(f"v_xor_b32 v{self.vB}, s{sTMP[2]}, v{self.vX[0]}")
        p(f"s_lshl_b32 s{sTMP[2]}, s{sS}, 2"); p(f"s_add_u32 s{sTMP[2]}, s{sTMP[2]}, s{sW}"); p(f"s_mul_i32 s{sTMP[2]}, s{sTMP[2]}, {8*896}")
        p(f"v_add_u32 v{self.vB}, s{sTMP[2]}, v{self.vB}")
        p(f"v_add_u32 v{self.vX[0]}, s{sTMP[0]}, v{self.vX[0]}")
        p(f"v_add_u32 v{self.vX[1]}, s{sTMP[0]}, v{self.vX[1]}")
        p(f"v_add_u32 v{self.vX[2]}, {16*896 - 2048}, v{self.vX[0]}")
        p(f"v_add_u32 v{self.vX[3]}, {24*896 - 3072}, v{self.vX[1]}")
        p(f"v_add_u32 v{self.vX[1]}, {8*896 - 1024}, v{self.vX[1]}")
        p(f"v_lshlrev_b32 v{vLANE16}, 4, v{vl}")
        p.wait_smem()
        if o["stamps"]:
            p("v_mov_b32 v0, 0"); p.raw("v_writelane_b32 v0, s60, 0"); p.raw("v_writelane_b32 v0, s43, 63"); self.nstamp = 1
        K = lambda i: sKA + 2 * i
        self.srd(S_X, K(0), 2048 * 896); self.srd(S_BRE, K(3), 448 * 896); self.srd(S_BIM, K(4), 448 * 896)
        pro = self.issue[-1]
        for it in pro[:2]:
            for x in self.dma_item(it): self.emit(x)
        self.srd(S_AUX, K(13), 896)
        p(f"s_mov_b32 m0, {L_GW}")
        p(f"buffer_load_dwordx4 v{vLANE16}, s[{S_AUX}:{S_AUX+3}], 0 offen lds", "GW")
        vn, vtau, vhi = t + 26, t + 27, t + 28
        self.tn = (vn, vtau, vhi)
        p(f"v_and_b32 v{vn}, 31, v{vl}"); p(f"v_lshrrev_b32 v{vhi}, 5, v{vl}")
        p(f"v_and_b32 v{vtau}, 3, v{vn}")
        p(f"v_lshrrev_b32 v{vt}, 3, v{vn}"); p(f"v_lshl_add_u32 v{vtau}, v{vt}, 2, v{vtau}")
        p(f"v_and_b32 v{vt}, 4, v{vn}"); p(f"v_lshl_add_u32 v{vtau}, v{vt}, 2, v{vtau}")
        p(f"s_lshl_b32 s{sTMP[0]}, s{sS}, 6")
        p(f"v_lshl_add_u32 v{vt}, v{vtau}, 1, s{sTMP[0]}")
        self.vPar = [t + 30, t + 31, t + 32]
        p(f"global_load_ushort v{self.vPar[0]}, v{vt}, s[{K(1)}:{K(1)+1}]")
        p(f"global_load_ushort v{self.vPar[1]}, v{vt}, s[{K(2)}:{K(2)+1}]")
        p(f"global_load_ushort v{self.vPar[2]}, v{vt}, s[{K(7)}:{K(7)+1}]")
        for it in pro[2:]:
            for x in self.dma_item(it): self.emit(x)
        self.srd(S_WG, K(10), 448 * 3584); self.srd(S_WU, K(11), 448 * 3584); self.srd(S_WD, K(12), 1792 * 896)
        p(f"s_cmp_eq_u32 s{sKH}, 0")
        p(f"s_cselect_b32 s{S_C}, s{K(5)}, s{K(6)}"); p(f"s_cselect_b32 s{S_C+1}, s{K(5)+1}, s{K(6)+1}")
        p(f"s_mov_b32 s{S_C+2}, {448*896:#x}"); p(f"s_mov_b32 s{S_C+3}, 0x20000")
        self.srd(S_WS, K(16), WS_SIZE); self.srd(S_OUT, K(14), 2048 * 448 * 4)
        p(f"s_mov_b64 s[0:1], s[{K(8)}:{K(8)+1}]")
        p(f"s_mov_b64 s[{sDBG}:{sDBG+1}], s[{K(15)}:{K(15)+1}]")
        p(f"s_mov_b64 s[{sDSK}:{sDSK+1}], s[0:1]")
        for i in range(2, 7):
            p(f"s_add_u32 s{sCX+i}, s{sCX+i-1}, 128"); p(f"s_cmp_eq_u32 s{sCX+i}, 896"); p(f"s_cselect_b32 s{sCX+i}, 0, s{sCX+i}")
        self.vXA = [t + 6 + j for j in range(4)]; self.vXB = [t + 10 + j for j in range(4)]; self.vBJ = [t + 14 + j for j in range(4)]
        self.vGW, self.vGW0 = t + 18, t + 19
        p(f"s_and_b32 s{sT0}, s{sW}, 1"); p(f"s_lshl_b32 s{sT0}, s{sT0}, 1"); p(f"s_lshr_b32 s{sTMP[0]}, s{sW}, 1"); p(f"s_add_u32 s{sT0}, s{sT0}, s{sTMP[0]}")
        p(f"v_lshrrev_b32 v{vt}, 1, v{vtau}"); p(f"v_and_b32 v{vt}, 7, v{vt}"); p(f"v_xor_b32 v{vt}, v{vt}, v{vhi}")
        p(f"v_lshlrev_b32 v{vt}, 4, v{vt}"); p(f"v_lshl_add_u32 v{self.vBJ[0]}, v{vtau}, 7, v{vt}")
        p(f"s_lshl_b32 s{sTMP[0]}, s{sT0}, 12")
        for j in range(1, 4): p(f"v_xor_b32 v{self.vBJ[j]}, {32*j}, v{self.vBJ[0]}")
        for j in range(4):
            p(f"v_add_u32 v{self.vXA[j]}, s{sTMP[0]}, v{self.vBJ[j]}"); p(f"v_xor_b32 v{self.vXB[j]}, 0x1000, v{self.vXA[j]}")
        p(f"v_lshlrev_b32 v{self.vGW0}, 4, v{vhi}"); p(f"v_add_u32 v{self.vGW0}, {L_GW}, v{self.vGW0}")
        p(f"v_mov_b32 v{TMP}, 0"); p(f"v_mov_b32 v{TMP+1}, 0")
        p(f"v_lshlrev_b32 v{vt}, 3, v{vl}"); p(f"s_lshl_b32 s{sTMP[0]}, s{sW}, 9"); p(f"s_add_u32 s{sTMP[0]}, s{sTMP[0]}, {L_E}")
        p(f"v_add_u32 v{vt}, s{sTMP[0]}, v{vt}")
        p(f"ds_write_b64 v{vt}, v[{TMP}:{TMP+1}]")

    def setup_fillers(self):
        vl, vrow, vc8, vq, vt, vu = self.tl; vn, vtau, vhi = self.tn
        a = []
        A = a.append
        T0, T1, T2 = sTMP
        for i in range(7): A(f"s_mul_i32 s{sCW+i}, s{sCX+i}, {64*3584//128}")
        A(f"v_and_b32 v{vt}, 1, v{vq}"); A(f"v_lshlrev_b32 v{vt}, 1, v{vt}"); A(f"v_xor_b32 v{vt}, v{vt}, v{vc8}")
        A(f"v_mul_u32_u24 v{vu}, 3584, v{vrow}"); A(f"v_lshl_add_u32 v{vWG[0]}, v{vt}, 4, v{vu}")
        A(f"s_mul_i32 s{T2}, s{sW}, {16*3584}"); A(f"v_add_u32 v{vWG[0]}, s{T2}, v{vWG[0]}")
        A(f"s_lshl_b32 s{T2}, s{sS}, 8"); A(f"v_add_u32 v{vWG[0]}, s{T2}, v{vWG[0]}")
        A(f"v_xor_b32 v{vWU[0]}, 64, v{vWG[0]}")
        A(f"v_add_u32 v{vWG[1]}, {8*3584 - 1024}, v{vWG[0]}"); A(f"v_add_u32 v{vWU[1]}, {8*3584 - 1024}, v{vWU[0]}")
        r4, c4, g1, b0 = TMP + 2, TMP + 3, TMP + 4, TMP + 5
        A(f"v_bfe_u32 v{r4}, v{vl}, 2, 2"); A(f"v_and_b32 v{c4}, 3, v{vl}"); A(f"v_and_b32 v{b0}, 1, v{vq}")
        A(f"v_lshrrev_b32 v{g1}, 1, v{r4}")
        A(f"v_lshl_add_u32 v{vt}, v{b0}, 1, v{g1}")
        A(f"s_and_b32 s{T2}, s{sW}, 2"); A(f"v_xor_b32 v{vt}, s{T2}, v{vt}")
        A(f"v_lshlrev_b32 v{vt}, 5, v{vt}"); A(f"v_lshl_add_u32 v{vt}, v{c4}, 3, v{vt}")
        A(f"v_lshl_add_u32 v{vu}, v{vhi}, 3, v{r4}"); A(f"v_lshl_add_u32 v{vt}, v{vu}, 7, v{vt}")
        A(f"v_lshl_add_u32 v{vWT[0]}, v{b0}, 13, v{vt}"); A(f"v_xor_b32 v{vWT[1]}, 32, v{vWT[0]}")
        A(f"v_lshl_add_u32 v{vt}, v{g1}, 1, v{b0}"); A(f"v_lshlrev_b32 v{vt}, 5, v{vt}"); A(f"v_lshl_add_u32 v{vt}, v{c4}, 3, v{vt}")
        A(f"v_lshl_add_u32 v{vu}, v{vhi}, 2, v{r4}"); A(f"v_lshl_add_u32 v{vt}, v{vu}, 7, v{vt}")
        A(f"v_add_u32 v{vWD[0]}, s{sM4}, v{vt}"); A(f"v_xor_b32 v{vWD[1]}, 64, v{vWD[0]}")
        self.vTW, self.vTR = TMP + 30, TMP + 31
        A(f"v_lshlrev_b32 v{vt}, 5, v{vhi}"); A(f"v_lshl_add_u32 v{vt}, v{vtau}, 6, v{vt}"); A(f"v_add_u32 v{self.vTW}, s{sM4}, v{vt}")
        A(f"v_and_b32 v{vt}, 1, v{c4}"); A(f"v_lshlrev_b32 v{vt}, 5, v{vt}"); A(f"v_lshl_add_u32 v{vt}, v{b0}, 4, v{vt}")
        A(f"v_lshrrev_b32 v{vu}, 1, v{c4}"); A(f"v_lshl_add_u32 v{vt}, v{vu}, 3, v{vt}")
        A(f"v_lshl_add_u32 v{vu}, v{vhi}, 3, v{r4}"); A(f"v_lshl_add_u32 v{vt}, v{vu}, 6, v{vt}"); A(f"v_add_u32 v{self.vTR}, s{sM4}, v{vt}")
        A(f"v_bfe_u32 v{vt}, v{vn}, 1, 3"); A(f"s_lshl_b32 s{T2}, s{sW}, 1"); A(f"v_xor_b32 v{vt}, v{vt}, v{vhi}"); A(f"v_xor_b32 v{vt}, s{T2}, v{vt}")
        A(f"v_lshlrev_b32 v{vt}, 4, v{vt}"); A(f"v_lshl_add_u32 v{vCA}, v{vn}, 7, v{vt}")
        A(f"s_lshl_b32 s{T2}, s{sN}, 2"); A(f"s_add_u32 s{T2}, s{T2}, s{sW}"); A(f"s_mul_i32 s{T2}, s{T2}, {16*896}")
        A(f"v_add_u32 v{vC[0]}, s{T2}, v{vC[0]}"); A(f"s_add_u32 s{T2}, s{T2}, {8*896 - 1024}"); A(f"v_add_u32 v{vC[1]}, s{T2}, v{vC[1]}")
        A(f"v_lshlrev_b32 v{vt}, 2, v{b0}"); A(f"v_xor_b32 v{vt}, v{vt}, v{vc8}"); A(f"v_mul_u32_u24 v{vu}, 896, v{vrow}")
        A(f"v_lshl_add_u32 v{vD[0]}, v{vt}, 4, v{vu}")
        A(f"s_mul_i32 s{T2}, s{sKH}, 56"); A(f"s_add_u32 s{T2}, s{T2}, s{sW}"); A(f"s_mul_i32 s{T2}, s{T2}, {16*896}")
        A(f"v_add_u32 v{vD[0]}, s{T2}, v{vD[0]}"); A(f"s_lshl_b32 s{T2}, s{sN}, 7"); A(f"v_add_u32 v{vD[0]}, s{T2}, v{vD[0]}")
        A(f"v_add_u32 v{vD[1]}, {8*896 - 1024}, v{vD[0]}"); A(f"v_add_u32 v{vD[2]}, {64*896 - 2048}, v{vD[0]}"); A(f"v_add_u32 v{vD[3]}, {72*896 - 3072}, v{vD[0]}")
        A(f"s_mov_b32 s{sJ}, s2")
        for i in range(1, 7):
            A(lambda i=i: [self.p(x) for x in (f"s_add_u32 s{sJ+i}, s{sJ+i-1}, 1", f"s_cmp_eq_u32 s{sJ+i}, 7", f"s_cselect_b32 s{sJ+i}, 0, s{sJ+i}")])
        vj = TMP + 6
        A(f"s_lshl_b32 s{T2}, s{sT0}, 1"); A(f"v_add_u32 v{vj}, s{T2}, v{vhi}")
        A(f"v_lshlrev_b32 v{vt}, 3, v{vn}"); A(f"v_lshl_add_u32 v{vE}, v{vj}, 8, v{vt}"); A(f"v_add_u32 v{vE}, {L_E}, v{vE}")
        self.base[vE] = L_E
        A(f"s_lshl_b32 s{T2}, s{sT0}, 7"); A(f"s_add_u32 s{T2}, s{T2}, {L_G}"); A(f"v_lshl_add_u32 v{vGA}, v{vtau}, 2, s{T2}")
        self.base[vGA] = L_G
        A(lambda: [self.p(x) for x in (f"v_cmp_eq_u32 vcc, 0, v{vl}", f"v_bfrev_b32 v{vt}, 1", f"v_cndmask_b32 v{vFLAG}, v{vt}, 0, vcc")])
        A(f"s_lshl_b32 s{T2}, s{sR}, 2"); A(f"s_add_u32 s{sH0}, s{T2}, s{sT0}"); A(f"s_xor_b32 s{sH1}, s{sH0}, 1")
        A(f"s_mul_i32 s{sH0}, s{sH0}, {168*1024}"); A(f"s_mul_i32 s{sH1}, s{sH1}, {168*1024}")
        A(f"s_lshl_b32 s{T2}, s{sS}, 11"); A(f"s_add_u32 s{sHS}, s{sH0}, s{T2}"); A(f"s_add_u32 s{sHS}, s{sHS}, {112*1024}")
        A(f"s_lshl_b32 s{T2}, s{sS}, 13"); A(f"s_add_u32 s{sH0}, s{sH0}, s{T2}"); A(f"s_add_u32 s{sH1}, s{sH1}, s{T2}")
        A(f"s_and_b32 s{T2}, s{sM1}, 2048"); A(f"s_add_u32 s{sH0}, s{sH0}, s{T2}"); A(f"s_add_u32 s{sH1}, s{sH1}, s{T2}")
        A(f"s_lshl_b32 s{sFS}, s{sS}, 8"); A(f"s_add_u32 s{sFS}, s{sFS}, {WS_FL}")
        A(f"s_lshl_b32 s{T2}, s{sR}, 8"); A(f"s_add_u32 s{sFH}, s{T2}, {WS_FL + 4096}")
        pr, pi, pd = self.vPar
        x0, x1, x2, x3, x4, x5 = [TMP + 8 + i for i in range(6)]
        A(f"v_lshlrev_b32 v{pr}, 16, v{pr}"); A(f"v_lshlrev_b32 v{pi}, 16, v{pi}"); A(f"v_lshlrev_b32 v{pd}, 16, v{pd}")
        A(f"v_mul_f32 v{pd}, 0x3fb8aa3b, v{pd}"); A(f"v_exp_f32 v{pd}, v{pd}")
        A(f"v_cvt_pk_bf16_f32 v{pd}, v{pd}, v{pd}"); A(f"v_lshlrev_b32 v{pd}, 16, v{pd}")
        A(f"v_mul_f32 v{x0}, v{pd}, v{pr}"); A(f"v_mul_f32 v{x1}, v{pd}, v{pi}")
        A(f"v_mul_f32 v{x0}, 0x3fb8aa3b, v{x0}"); A(f"v_exp_f32 v{x0}, v{x0}")
        A(f"v_mul_f32 v{x1}, 0.15915494, v{x1}"); A(f"v_rndne_f32 v{x2}, v{x1}"); A(f"v_sub_f32 v{x1}, v{x1}, v{x2}")
        A(f"v_cos_f32 v{x2}, v{x1}"); A(f"v_sin_f32 v{x3}, v{x1}")
        A(f"v_mul_f32 v{vLR}, v{x0}, v{x2}"); A(f"v_mul_f32 v{vLI}, v{x0}, v{x3}"); A(f"v_sub_f32 v{vNLI}, 0, v{vLI}")
        A(f"v_mul_f32 v{x0}, v{pr}, v{pr}"); A(f"v_fmac_f32 v{x0}, v{pi}, v{pi}"); A(f"v_rcp_f32 v{x0}, v{x0}")
        A(f"v_add_f32 v{x1}, -1.0, v{vLR}"); A(f"v_add_f32 v{x0}, v{x0}, v{x0}")
        A(f"v_mul_f32 v{x2}, v{x1}, v{pr}"); A(f"v_fmac_f32 v{x2}, v{vLI}, v{pi}")
        A(f"v_mul_f32 v{x3}, v{vLI}, v{pr}"); A(f"v_fma_f32 v{x3}, -v{x1}, v{pi}, v{x3}")
        A(f"v_mul_f32 v{vKR}, v{x2}, v{x0}"); A(f"v_mul_f32 v{vKI}, v{x3}, v{x0}"); A(f"v_sub_f32 v{vNKI}, 0, v{vKI}")
        a += self.csq(x0, x1, vLR, vLI) + self.csq(x2, x3, x0, x1) + self.csq(x0, x1, x2, x3) + self.csq(vMR, vMI, x0, x1)
        A(lambda: [self.p(x) for x in (f"v_and_b32 v{vt}, 1, v{vj}", f"v_cmp_eq_u32 vcc, 1, v{vt}",
                                        f"v_cndmask_b32 v{vJR}, 1.0, v{vMR}, vcc", f"v_cndmask_b32 v{vJI}, 0, v{vMI}, vcc")])
        a += self.csq(x0, x1, vMR, vMI) + self.cmul(x4, x5, vJR, vJI, x0, x1)
        A(lambda: [self.p(x) for x in (f"v_and_b32 v{vt}, 2, v{vj}", f"v_cmp_eq_u32 vcc, 2, v{vt}",
                                        f"v_cndmask_b32 v{vJR}, v{vJR}, v{x4}, vcc", f"v_cndmask_b32 v{vJI}, v{vJI}, v{x5}, vcc")])
        a += self.csq(x2, x3, x0, x1) + self.cmul(x4, x5, vJR, vJI, x2, x3)
        A(lambda: [self.p(x) for x in (f"v_and_b32 v{vt}, 4, v{vj}", f"v_cmp_eq_u32 vcc, 4, v{vt}",
                                        f"v_cndmask_b32 v{vJR}, v{vJR}, v{x4}, vcc", f"v_cndmask_b32 v{vJI}, v{vJI}, v{x5}, vcc")])
        a += self.csq(vNR, vNI, x2, x3)
        a += self.csq(x0, x1, vNR, vNI) + self.csq(x2, x3, x0, x1) + self.csq(vN8R, vN8I, x2, x3)
        self.vSst, self.vSld, self.vFSo, self.vL4 = TMP + 26, TMP + 27, TMP + 28, TMP + 29
        A(lambda: [self.p(x) for x in (f"v_cmp_eq_u32 vcc, 7, v{vj}", f"v_bfrev_b32 v{vt}, 1", f"v_lshlrev_b32 v{vu}, 3, v{vn}",
                                        f"v_cndmask_b32 v{self.vSst}, v{vt}, v{vu}, vcc",
                                        f"v_cmp_eq_u32 vcc, 0, v{self.vSst}", f"v_cndmask_b32 v{self.vFSo}, v{vt}, 0, vcc")])
        A(f"s_sub_u32 s{T2}, s{sR}, 8"); A(f"s_lshl_b32 s{T2}, s{T2}, 8"); A(f"v_lshlrev_b32 v{vt}, 11, v{vhi}")
        A(f"v_sub_u32 v{self.vSld}, v{vu}, v{vt}"); A(f"v_add_u32 v{self.vSld}, s{T2}, v{self.vSld}")
        A(f"v_lshlrev_b32 v{self.vL4}, 2, v{vl}")
        A(lambda: [self.p(x) for x in (f"s_lshl_b32 s{T2}, s{sS}, 12", f"s_add_u32 s{T2}, s{T2}, {WS_S}",
                                        f"s_add_u32 s{S_AUX}, s{S_WS}, s{T2}", f"s_addc_u32 s{S_AUX+1}, s{S_WS+1}, 0",
                                        f"s_mov_b32 s{S_AUX+2}, 4096", f"s_mov_b32 s{S_AUX+3}, 0x20000")])
        return a

    def XR(self, pos, j, lt): return 32 * pos + 8 * j + 4 * lt

    def mlp_epilogue(self, acc, q, pk=False):
        L = []
        for t in range(2):
            for lt in range(2):
                a = acc + 32 * t + 16 * lt
                for j in range(8): L.append(f"v_mul_f32 v{a+j}, v{vOM[lt]}, v{a+j}")
                for j in range(8): L.append(f"v_mul_f32 v{a+j}, v{a+j}, v{a+8+j}")
                for j in range(4): L.append(f"v_cvt_pk_bf16_f32 v{a+8+j}, v{a+2*j}, v{a+2*j+1}")
                L.append(Ins(f"buffer_store_dwordx4 v[{a+8}:{a+11}], v{vLANE16}, s[{S_WS}:{S_WS+3}], s{(sH0, sH1)[lt]} offen" + (" offset:1024" if t else "") + " sc1", f"H{q}"))
        return L

    def flag(self, val, voff, soff, tags):
        def f():
            self.p(f"v_mov_b32 v{vVAL}, {val}")
            self.p.wait_tags(vm_tags=tags)
            self.p(f"buffer_store_dword v{vVAL}, v{voff}, s[{S_WS}:{S_WS+3}], s{soff} offen sc1")
        return f

    def phase1(self):
        p, o = self.p, self.o
        self.new_slots()
        first = {}
        def reads(c, j):
            k = (4 * c + j) & 1
            if c < 7:
                fb = FB + 12 * k; bx = self.pos[f"X{c}"]; bb = self.pos[f"B{c}"]
                L = []
                if j == 0: L.append(f"v_add_u32 v{self.vGW}, s{sCX+c}, v{self.vGW0}")
                x0, x1 = self.XR(c, j, 0), self.XR(c, j, 1)
                L += [("ds", f"ds_read_b128 a[{x0}:{x0+3}]", self.vXA[j], bx), ("ds", f"ds_read_b128 v[{fb}:{fb+3}]", self.vBJ[j], bb),
                      ("ds", f"ds_read_b128 v[{fb+4}:{fb+7}]", self.vBJ[j], bb + 4096), ("ds", f"ds_read_b128 v[{fb+8}:{fb+11}]", self.vGW, 32 * j),
                      ("ds", f"ds_read_b128 a[{x1}:{x1+3}]", self.vXB[j], bx)]
                return L
            fb = FB + 12 * k; b = self.pos[f"W{c-7}"]
            return [("ds", f"ds_read_b64_tr_b16 v[{fb+4*t+2*rd}:{fb+4*t+2*rd+1}]", vWT[t], b + j * 2048 + rd * 512) for t in range(2) for rd in range(2)]
        def barrier(c):
            tags = [it for it, u in self.use.items() if u == c] + (["GW"] if c == 0 else [])
            def f():
                p.wait_tags(vm_tags=tags, lg_all=True); p("s_barrier")
            return f
        ZA = ACB
        for c in range(21):
            for j in range(4):
                k = (4 * c + j) & 1; fb = FB + 12 * k
                pre = [barrier(c + 1)] if j == 3 else []
                if o["stamps"] and j == 0 and c in o.get("st1", (0, 1, 7, 14)): pre = pre + [self.stamp]
                if c < 7:
                    x0 = self.XR(c, j, 0); z = (c == 0 and j == 0)
                    ms = [f"v_mfma_f32_32x32x16_bf16 v[{ACS}:{ACS+15}], a[{x0}:{x0+3}], v[{fb}:{fb+3}], " + ("0" if z else f"v[{ACS}:{ACS+15}]"),
                          f"v_mfma_f32_32x32x16_bf16 v[{ACS+16}:{ACS+31}], a[{x0}:{x0+3}], v[{fb+4}:{fb+7}], " + ("0" if z else f"v[{ACS+16}:{ACS+31}]"),
                          f"v_mfma_f32_32x32x16_bf16 v[{ZA}:{ZA+15}], v[{fb+8}:{fb+11}], a[{x0}:{x0+3}], " + ("0" if z else f"v[{ZA}:{ZA+15}]")]
                else:
                    acc = ACA if c < 14 else ACB; pos = (c - 7) % 7; z = (pos == 0 and j == 0); ms = []
                    for t in range(2):
                        for lt in range(2):
                            a = acc + 32 * t + 16 * lt; x = self.XR(pos, j, lt)
                            ms.append(f"v_mfma_f32_32x32x16_bf16 v[{a}:{a+15}], v[{fb+4*t}:{fb+4*t+3}], a[{x}:{x+3}], " + ("0" if z else f"v[{a}:{a+15}]"))
                for m, t in enumerate(ms):
                    s = self.add_slot(t, pre if m == 0 else None)
                    if m == 0: first[(c, j)] = s
                nc, nj = (c, j + 1) if j < 3 else (c + 1, 0)
                if nc < 21:
                    R = reads(nc, nj); s0 = first[(c, j)]
                    h = (len(R) + 1) // 2
                    self.slots[s0]["post"] += R[:h]; self.slots[s0 + 1]["post"] += R[h:]
        nslot = len(self.slots)
        beta = lambda c: first[(c - 1, 3)] if c > 0 else 0
        wend = lambda c: beta(c + 1) if c < 21 else nslot
        self.beta = beta
        self.slots[0]["pre"] = [barrier(0)] + reads(0, 0) + self.slots[0]["pre"]
        for w in sorted(self.issue):
            if w < 0: continue
            L = []
            for it in self.issue[w]: L += self.dma_item(it)
            self.spread(beta(w), wend(w), L)
        for j, w in enumerate(self.move):
            if w <= 20: self.spread(beta(w) + 2, wend(w) - 3, self.move_item(j))
        self.spread(0, beta(5), self.setup_fillers())
        vl, vrow, vc8, vq, vt, vu = self.tl
        U = lambda i: ACS + i
        V = lambda i: ACS + 16 + i
        t0 = TMP
        G = [f"v_cvt_pk_bf16_f32 v{t0}, v{ZA}, v{ZA}", f"v_lshlrev_b32 v{t0}, 16, v{t0}", f"v_mul_f32 v{t0}, 0xbfb8aa3b, v{t0}",
             f"v_exp_f32 v{t0}, v{t0}", f"v_add_f32 v{t0}, 1.0, v{t0}", f"v_rcp_f32 v{t0}, v{t0}",
             f"v_cvt_pk_bf16_f32 v{t0}, v{t0}, v{t0}", f"v_lshlrev_b32 v{t0}, 16, v{t0}", f"v_sub_f32 v{t0+1}, 1.0, v{t0}",
             f"v_cvt_pk_bf16_f32 v{t0+1}, v{t0+1}, v{t0+1}", f"v_lshlrev_b32 v{vOM[0]}, 16, v{t0+1}",
             ("dsw", "ds_write_b32", vGA, f"v{t0}", L_G), ("dsw", "ds_write_b32", vGA, f"v{vOM[0]}", L_G + 512)]
        H1 = []; cur = (U(0), V(0)); pp = [(t0 + 2, t0 + 3), (t0 + 4, t0 + 5)]
        for i in range(1, 16):
            d = pp[i & 1]
            H1 += [f"v_fma_f32 v{d[0]}, v{vLR}, v{cur[0]}, v{U(i)}", f"v_fma_f32 v{d[1]}, v{vLR}, v{cur[1]}, v{V(i)}",
                   f"v_fmac_f32 v{d[0]}, v{vNLI}, v{cur[1]}", f"v_fmac_f32 v{d[1]}, v{vLI}, v{cur[0]}"]
            cur = d
        Eo = cur
        H1.append(("dsw", "ds_write_b64", vE, f"v[{Eo[0]}:{Eo[1]}]", L_E + 7 * 256))
        a0 = first[(7, 0)]
        self.spread(a0 + 1, beta(9) - 2, H1 + G)
        self.slots[beta(8)]["fill"].append(f"v_mov_b32 v{vVAL}, 0")
        self.slots[beta(8)]["fill"].append(f"global_load_dword v{vPOLL}, v{vVAL}, s[{sDBG}:{sDBG+1}] sc1")
        eb = ACB + 32
        P = [("ds", f"ds_read_b64 v[{eb+2*e}:{eb+2*e+1}]", vE, L_E + 256 * e) for e in range(7)]
        P.append(f"v_xor_b32 v{t0}, 128, v{vGA}")
        P.append(f"ds_read_b32 v{vOM[1]}, v{t0} offset:512")
        cur = (eb, eb + 1)
        for e in range(1, 7):
            d = (eb + 2 * e, eb + 2 * e + 1) if e < 6 else (vPR, vPI)
            P += self.cfma(d[0], d[1], vMR, vMI, cur[0], cur[1], eb + 2 * e, eb + 2 * e + 1); cur = d
        P += self.cfma(Eo[0], Eo[1], vMR, vMI, vPR, vPI, Eo[0], Eo[1])
        P.append(f"s_lshl_b32 s{sTMP[2]}, s{sR}, 8")
        P.append(Ins(f"buffer_store_dwordx2 v[{Eo[0]}:{Eo[1]}], v{self.vSst}, s[{S_AUX}:{S_AUX+3}], s{sTMP[2]} offen sc1", "SST"))
        self.spread(beta(9), beta(10) - 2, P)
        def gate_check():
            k = self.nlab; self.nlab += 1
            p(f"v_cmp_ne_u32 vcc, 0, v{vPOLL}"); p("s_cmp_lg_u64 vcc, 0"); p(f"s_cbranch_scc1 L_ok{k}")
            p(f"s_mov_b32 s{sSPIN}, 0"); p.label(f"L_spin{k}")
            p.raw(f"global_load_dword v{vPOLL}, v{vVAL}, s[{sDBG}:{sDBG+1}] sc1")
            p.raw(f"s_add_u32 s{sSPIN}, s{sSPIN}, 1"); p.raw(f"s_cmp_ge_u32 s{sSPIN}, {o['spin']}"); p.raw(f"s_cbranch_scc1 L_giveup{k}")
            p.raw("s_waitcnt vmcnt(0)"); p.raw(f"v_cmp_ne_u32 vcc, 0, v{vPOLL}"); p.raw("s_cmp_lg_u64 vcc, 0"); p.raw(f"s_cbranch_scc0 L_spin{k}")
            p.label(f"L_giveup{k}"); p.raw("s_waitcnt vmcnt(0)"); p.label(f"L_ok{k}")
        self.slots[beta(10)]["fill"].append(gate_check)
        KM = []
        for i in range(16):
            tt = t0 + (i & 1)
            KM += [f"v_mul_f32 v{tt}, v{vKI}, v{U(i)}", f"v_mul_f32 v{U(i)}, v{vKR}, v{U(i)}",
                   f"v_fmac_f32 v{U(i)}, v{vNKI}, v{V(i)}", f"v_fma_f32 v{V(i)}, v{vKR}, v{V(i)}, v{tt}"]
        self.spread(beta(10) + 1, beta(13), KM)
        wfs, wpoll = o.get("w_fs", 12), o.get("w_fspoll", 14)
        def fs_flag():
            p(f"s_lshl_b32 s{sTMP[2]}, s{sR}, 2"); p(f"s_add_u32 s{sTMP[2]}, s{sTMP[2]}, s{sFS}")
            self.flag(1, self.vFSo, sTMP[2], ["SST"])()
        self.slots[beta(wfs) - 6]["fill"].append(fs_flag)
        self.slots[beta(wpoll) - 8]["fill"].append(self.poll_issue(self.vL4, f"s{sFS}"))
        sb = TMP + 8
        SL = [lambda: [p(x) for x in (f"s_lshl_b32 s{sMASK}, 1, s{sR}", f"s_sub_u32 s{sMASK}, s{sMASK}, 1", f"s_mov_b32 s{sMASK+1}, 0")],
              self.poll_check(self.vL4, f"s{sFS}", 1)]
        for e in range(8):
            SL.append(f"buffer_load_dwordx2 v[{sb+2*e}:{sb+2*e+1}], v{self.vSld}, s[{S_AUX}:{S_AUX+3}], 0 offen sc1")
            if e < 7: SL.append(f"v_add_u32 v{self.vSld}, 0x100, v{self.vSld}")
        self.spread(beta(wpoll) + 4, beta(wpoll) + 12, SL)
        b0 = first[(14, 0)]
        EA = self.mlp_epilogue(ACA, 0) + [f"s_add_u32 s{sH0}, s{sH0}, 4096", f"s_add_u32 s{sH1}, s{sH1}, 4096"]
        self.spread(b0 + 2, beta(16), EA)
        def fh_addr():
            p(f"s_lshl_b32 s{sTMP[2]}, s{sS}, 2"); p(f"s_add_u32 s{sTMP[2]}, s{sTMP[2]}, s{sW}"); p(f"s_lshl_b32 s{sTMP[2]}, s{sTMP[2]}, 2")
            p(f"s_add_u32 s{sFP}, s{sFH}, s{sTMP[2]}")
        self.slots[beta(16)]["fill"].append(fh_addr)
        self.slots[beta(o.get("w_fa", 18)) - 6]["fill"].append(self.flag(1, vFLAG, sFP, ["H0"]))
        gb = ACA
        C2 = [f"v_and_b32 v{t0}, 32, v{self.vL4}", f"v_lshrrev_b32 v{t0}, 7, v{self.vL4}", f"v_lshlrev_b32 v{t0}, 6, v{t0}",
              f"s_lshl_b32 s{sTMP[2]}, s{sT0}, 7", f"s_add_u32 s{sTMP[2]}, s{sTMP[2]}, {L_G}", f"v_add_u32 v{t0}, s{sTMP[2]}, v{t0}"][1:]
        C2 += [f"ds_read_b128 v[{gb+4*e}:{gb+4*e+3}], v{t0} offset:{16*e}" for e in range(4)]
        cur = (sb, sb + 1)
        for e in range(1, 8):
            d = (sb + 2 * e, sb + 2 * e + 1)
            C2 += self.cfma(d[0], d[1], vNR, vNI, cur[0], cur[1], d[0], d[1]); cur = d
        C2 += [f"v_mov_b32 v{sb}, v{cur[0]}", f"v_mov_b32 v{sb+1}, v{cur[1]}",
               f"v_permlane32_swap_b32 v{cur[0]}, v{sb}", f"v_permlane32_swap_b32 v{cur[1]}, v{sb+1}"]
        C2 += self.cfma(cur[0], cur[1], vN8R, vN8I, sb, sb + 1, cur[0], cur[1])
        C2 += self.cfma(vPR, vPI, vJR, vJI, cur[0], cur[1], vPR, vPI)
        C2 += self.cmul(sb, sb + 1, vKR, vKI, vPR, vPI)
        cur = (sb, sb + 1)
        for i in range(16):
            C2 += [f"v_fmac_f32 v{U(i)}, v{vLR}, v{cur[0]}", f"v_fmac_f32 v{V(i)}, v{vLR}, v{cur[1]}",
                   f"v_fmac_f32 v{U(i)}, v{vNLI}, v{cur[1]}", f"v_fmac_f32 v{V(i)}, v{vLI}, v{cur[0]}"]
            cur = (U(i), V(i))
        pk = ACA + 16; fr = ACA + 32; tb = self.pos["TB"]
        for i in range(16): C2 += [f"v_mul_f32 v{U(i)}, v{gb+i}, v{U(i)}", f"v_mul_f32 v{V(i)}, v{gb+i}, v{V(i)}"]
        for i in range(8): C2.append(f"v_cvt_pk_bf16_f32 v{pk+i}, v{U(2*i)}, v{U(2*i+1)}")
        C2 += [("dsw", "ds_write_b128", self.vTW, f"v[{pk}:{pk+3}]", tb), ("dsw", "ds_write_b128", self.vTW, f"v[{pk+4}:{pk+7}]", tb + 16)]
        for i in range(8): C2.append(f"v_cvt_pk_bf16_f32 v{pk+8+i}, -v{V(2*i)}, -v{V(2*i+1)}")
        C2 += [("dsw", "ds_write_b128", self.vTW, f"v[{pk+8}:{pk+11}]", tb + 2048), ("dsw", "ds_write_b128", self.vTW, f"v[{pk+12}:{pk+15}]", tb + 2064)]
        for cpt in range(2):
            for q in range(2):
                for rd in range(2):
                    r = fr + 8 * cpt + 4 * q + 2 * rd
                    C2.append(("ds", f"ds_read_b64_tr_b16 v[{r}:{r+1}]", self.vTR, tb + cpt * 2048 + q * 1024 + rd * 256))
        C3 = []
        for cpt in range(2):
            for q in range(2):
                r = fr + 8 * cpt + 4 * q
                C3.append(Ins(f"buffer_store_dwordx4 v[{r}:{r+3}], v{vLANE16}, s[{S_WS}:{S_WS+3}], s{sHS} offen" + (" offset:1024" if q else "") + " sc1", "HS"))
            if cpt == 0: C3.append(f"s_add_u32 s{sHS}, s{sHS}, {28*1024}")
        w2a, w2b = o.get("w_scan", (16, 20))
        self.spread(beta(w2a) + 1, beta(w2b) - 4, C2)
        self.spread(beta(w2b) - 2, beta(w2b) + 2, C3)
        self.nslot1 = nslot

    def phase2(self):
        p, o = self.p, self.o
        RING = o["ring"]; ra = 144
        sJA, sJB, sJS = sCX, sCW, sJ
        vH = [5, 6, 7, 8]
        ACC = [64, 96, 128, 192]
        order = [("A", tp) for tp in range(4)] + [("S", 0), ("S", 1), ("B", 0), ("B", 1), ("S", 2), ("B", 2), ("S", 3), ("B", 3)]
        steps = [(part, tp, j) for (part, tp) in order for j in range(7)]
        T2 = sTMP[2]
        su = []
        for j in range(7):
            su += [f"s_lshl_b32 s{sJA+j}, s{sJ+j}, 13", f"s_add_u32 s{sJB+j}, s{sJA+j}, 4096"]
        su += [f"s_mul_i32 s{T2}, s{sKH}, {-28*1024 & 0xffffffff:#x}", f"s_add_u32 s{T2}, s{T2}, {112*1024}"]
        for j in range(7): su += [f"s_lshl_b32 s{sJS+j}, s{sJ+j}, 12", f"s_add_u32 s{sJS+j}, s{sJS+j}, s{T2}"]
        for tp in range(4):
            su += [f"s_lshl_b32 s{T2}, s{sKH}, 1", f"s_add_u32 s{T2}, s{T2}, {2+tp}", f"s_and_b32 s{T2}, s{T2}, 3",
                   f"s_lshl2_add_u32 s{T2}, s{sR}, s{T2}", f"s_mul_i32 s{T2}, s{T2}, {168*1024}", f"s_add_u32 s{T2}, s{T2}, s{sM1}",
                   f"v_add_u32 v{vH[tp]}, s{T2}, v{vLANE16}", f"s_mul_i32 s{T2}, s{sKH}, {56*1024}", f"v_add_u32 v{vH[tp]}, s{T2}, v{vH[tp]}"]
        lastdma = max(w for w in self.issue)
        assert lastdma <= 18
        self.spread(self.beta(19), self.beta(20), su)
        def hload(k):
            part, tp, j = steps[k]; r = ra + 4 * (k % RING)
            so = {"A": sJA, "B": sJB, "S": sJS}[part] + j
            return f"buffer_load_dwordx4 a[{r}:{r+3}], v{vH[tp]}, s[{S_WS}:{S_WS+3}], s{so} offen sc1"
        def maskhalf():
            p(f"s_mul_i32 s{T2}, s{sKH}, 28"); p(f"s_lshl_b64 s[{sMASK}:{sMASK+1}], 0xfffffff, s{T2}")
        def maskall():
            p(f"s_mov_b32 s{sMASK}, -1"); p(f"s_mov_b32 s{sMASK+1}, 0xffffff")
        n1 = self.nslot1
        self.slots[self.beta(20)]["fill"].append(self.poll_issue(self.vL4, f"s{sFH}"))
        early = o.get("early", 8)
        E = [maskhalf, self.poll_check(self.vL4, f"s{sFH}", 1)] + [hload(k) for k in range(early)]
        self.spread(n1 - 8, n1, E)
        EB = self.mlp_epilogue(ACB, 1)
        s = self.add_slot(None, ([self.stamp] if o["stamps"] else []) + EB + [self.flag(2, vFLAG, sFP, ["HS"])] + [hload(k) for k in range(early, RING)] + ([self.stamp] if o["stamps"] else []))
        first = {}
        started = set()
        for k, (part, tp, j) in enumerate(steps):
            r = ra + 4 * (k % RING); wa = self.W2A[j] + {"A": 0, "B": 8, "S": 16}[part]
            for dt in range(2):
                a = ACC[tp] + 16 * dt
                c = f"v[{a}:{a+15}]" if (tp, dt) in started else "0"
                started.add((tp, dt))
                s = self.add_slot(f"v_mfma_f32_32x32x16_bf16 v[{a}:{a+15}], a[{wa+4*dt}:{wa+4*dt+3}], a[{r}:{r+3}], {c}")
                if dt == 0:
                    first[k] = s
                    if o["stamps"] and o.get("st2") and k % 7 == 0 and k: self.slots[s]["pre"].append(self.stamp)
            if k + RING < len(steps): self.slots[s]["post"].append(hload(k + RING))
        nst = len(steps)
        last = {tp: max(k for k, st in enumerate(steps) if st[1] == tp) for tp in range(4)}
        self.slots[first[o.get("k_fb", 8)]]["fill"].append(self.flag(3, vFLAG, sFP, ["H1"]))
        for (k0, val, mask) in ((28, 2, maskall), (42, 3, maskhalf)):
            kc = k0 - RING
            self.slots[first[kc - o.get("poll_lead", 5)]]["fill"].append(self.poll_issue(self.vL4, f"s{sFH}"))
            self.slots[first[kc]]["fill"] += [mask, self.poll_check(self.vL4, f"s{sFH}", val)]
        vRW = [26, 27, 28, 29]; vRR = 30; vO = 31; vXo = 32; vPo = 33; SK = TMP; t = 40
        ln = self.vL4
        su = [f"v_lshrrev_b32 v{t}, 2, v{ln}",
              f"v_and_b32 v{t+1}, 7, v{t}", f"v_lshrrev_b32 v{t+2}, 5, v{t}", f"v_xor_b32 v{t+1}, v{t+1}, v{t+2}", f"v_lshlrev_b32 v{t+1}, 4, v{t+1}",
              f"v_subrev_u32 v{t+2}, {L_G}, v{vGA}", f"v_and_b32 v{t+2}, 0x7f, v{t+2}",
              f"v_lshl_add_u32 v{t+1}, v{t+2}, 6, v{t+1}", f"s_lshl_b32 s{T2}, s{sW}, 13", f"v_add_u32 v{vRW[0]}, s{T2}, v{t+1}"]
        su += [f"v_xor_b32 v{vRW[a]}, {32*a}, v{vRW[0]}" for a in range(1, 4)]
        su += [f"v_lshrrev_b32 v{t+1}, 4, v{t}", f"v_and_b32 v{t+2}, 15, v{t}",
               f"s_and_b32 s{T2}, s{sW}, 2", f"s_lshl_b32 s{T2}, s{T2}, 1", f"v_xor_b32 v{t+3}, v{t+2}, v{t+1}", f"v_xor_b32 v{t+3}, s{T2}, v{t+3}",
               f"v_lshlrev_b32 v{t+3}, 4, v{t+3}", f"v_lshl_add_u32 v{t+3}, v{t+1}, 8, v{t+3}", f"v_add_u32 v{vRR}, s{sM2}, v{t+3}",
               f"s_lshl_b32 s{T2}, s{sKH}, 3", f"s_add_u32 s{T2}, s{T2}, s{sW}", f"s_lshl_b32 s{T2}, s{T2}, 3", f"v_add_u32 v{t+1}, s{T2}, v{t+1}",
               f"v_lshlrev_b32 v{t+4}, 2, v{t+1}", f"v_add_u32 v{t+4}, {L_G}, v{t+4}",
               f"s_lshl_b32 s{T2}, s{sR}, 7", f"v_add_u32 v{t+1}, s{T2}, v{t+1}", f"v_mul_u32_u24 v{t+1}, 896, v{t+1}",
               f"s_lshl_b32 s{T2}, s{sN}, 7", f"v_lshl_add_u32 v{t+2}, v{t+2}, 3, s{T2}",
               f"v_add_u32 v{vXo}, v{t+1}, v{t+2}", f"v_lshlrev_b32 v{vO}, 1, v{vXo}",
               f"global_load_dwordx2 v[{t+6}:{t+7}], v{t+2}, s[{sDSK}:{sDSK+1}]"]
        for e in range(4):
            off = (32 * (e >> 1) + 4 * (e & 1))
            su += [f"s_mov_b32 s{T2}, {off*896}", f"buffer_load_dwordx2 v[{t+8+2*e}:{t+9+2*e}], v{vXo}, s[{S_X}:{S_X+3}], s{T2} offen",
                   f"ds_read_b32 v{t+16+e}, v{t+4} offset:{4*off}"]
        su += [f"s_mul_i32 s{sPs}, s{sR}, 14", f"s_add_u32 s{sPr}, s{sPs}, s{sN}", f"s_add_u32 s{sPs}, s{sPs}, s{sS}",
               f"s_mul_i32 s{T2}, s{sKH}, -7", f"s_add_u32 s{T2}, s{T2}, 7", f"s_add_u32 s{sPr}, s{sPr}, s{T2}",
               f"s_lshl_b32 s{sPs}, s{sPs}, 14", f"s_lshl_b32 s{sPr}, s{sPr}, 14",
               f"s_add_u32 s{sPs}, s{sPs}, {WS_PART}", f"s_add_u32 s{sPr}, s{sPr}, {WS_PART}",
               f"v_add_u32 v{vPo}, s{sM2}, v{vLANE16}",
               f"s_add_u32 s{T2}, s{T2}, s{sN}", f"s_lshl_b32 s{T2}, s{T2}, 2", f"s_add_u32 s{T2}, s{T2}, s{sW}", f"s_lshl_b32 s{T2}, s{T2}, 2",
               f"s_add_u32 s{sFPr}, s{sFH}, s{T2}", f"s_add_u32 s{sFPr}, s{sFPr}, 4096"]
        for r_ in vRW + [vRR]: self.base[r_] = 0
        self.spread(first[0], first[10], su)
        sk = [f"v_lshlrev_b32 v{t}, 16, v{t+6}", f"v_and_b32 v{t+1}, 0xffff0000, v{t+6}", f"v_lshlrev_b32 v{t+2}, 16, v{t+7}", f"v_and_b32 v{t+3}, 0xffff0000, v{t+7}"]
        for e in range(4):
            x = t + 8 + 2 * e; d = SK + 4 * e
            sk += [f"v_lshlrev_b32 v{d}, 16, v{x}", f"v_and_b32 v{d+1}, 0xffff0000, v{x}", f"v_lshlrev_b32 v{d+2}, 16, v{x+1}", f"v_and_b32 v{d+3}, 0xffff0000, v{x+1}"]
            sk += [f"v_mul_f32 v{d+i}, v{d+i}, v{t+i}" for i in range(4)]
            sk += [f"v_cvt_pk_bf16_f32 v{x}, v{d}, v{d+1}", f"v_cvt_pk_bf16_f32 v{x+1}, v{d+2}, v{d+3}"]
            sk += [f"v_lshlrev_b32 v{d}, 16, v{x}", f"v_and_b32 v{d+1}, 0xffff0000, v{x}", f"v_lshlrev_b32 v{d+2}, 16, v{x+1}", f"v_and_b32 v{d+3}, 0xffff0000, v{x+1}"]
            sk += [f"v_mul_f32 v{d+i}, v{d+i}, v{t+16+e}" for i in range(4)]
        self.spread(first[28], first[42], sk)
        RD = 160
        PT = TMP + 16
        PTs = [TMP + 16, 40]
        def red_write(tp):
            rb = self.pos[f"RB{tp&1}"]
            return [("dsw", "ds_write_b128", vRW[a], f"v[{ACC[tp]+16*dt+4*a}:{ACC[tp]+16*dt+4*a+3}]", rb + 128 * dt) for dt in range(2) for a in range(4)]
        def red_bar():
            p.wait_tags(lg_all=True); p("s_barrier")
        def red_read(tp):
            rb = self.pos[f"RB{tp&1}"]
            return [("ds", f"ds_read_b128 v[{RD+16*i+4*w}:{RD+16*i+4*w+3}]", vRR, rb + 8192 * w + 1024 * i) for i in range(2) for w in range(4)]
        def red_fin(tp):
            L = []
            for i in range(2):
                b = RD + 16 * i
                L += [f"v_add_f32 v{b+e}, v{b+e}, v{b+4+e}" for e in range(4)] + [f"v_add_f32 v{b+8+e}, v{b+8+e}, v{b+12+e}" for e in range(4)]
                L += [f"v_add_f32 v{b+e}, v{b+e}, v{b+8+e}" for e in range(4)]
                if tp < 2:
                    if tp == 1 and i == 0: L.append(f"s_add_u32 s{sPs}, s{sPs}, 8192")
                    L.append(Ins(f"buffer_store_dwordx4 v[{b}:{b+3}], v{vPo}, s[{S_WS}:{S_WS+3}], s{sPs} offen" + (" offset:1024" if i else "") + " sc1", "PS"))
                else:
                    L += [f"v_add_f32 v{SK+8*(tp-2)+4*i+e}, v{b+e}, v{SK+8*(tp-2)+4*i+e}" for e in range(4)]
            return L
        def out_store(tp):
            L = []
            for i in range(2):
                d = SK + 8 * (tp - 2) + 4 * i
                L += [f"v_add_f32 v{d+e}, v{d+e}, v{PTs[tp-2]+4*i+e}" for e in range(4)]
                L += [f"s_mov_b32 s{T2}, {(32*(tp-2) + 4*i)*1792}",
                      f"buffer_store_dwordx4 v[{d}:{d+3}], v{vO}, s[{S_OUT}:{S_OUT+3}], s{T2} offen {o['out_flags']}".rstrip()]
            return L
        for tp in range(3):
            k = last[tp] + 1
            self.spread(first[k] + 1, first[k + 2] + 1, red_write(tp))
            self.slots[first[k + 3]]["fill"] += [red_bar] + red_read(tp)
            self.spread(first[k + 4], first[k + 6] + 1, red_fin(tp))
        kf = last[1] + 1 + o.get("k_fp", 16)
        self.slots[first[kf]]["fill"] += [f"s_add_u32 s{sFP}, s{sFP}, 4096", self.flag(1, vFLAG, sFP, ["PS"])]
        self.slots[first[nst - 3]]["fill"].append(self.poll_issue(vFLAG, f"s{sFPr}"))
        def one(): p(f"s_mov_b64 s[{sMASK}:{sMASK+1}], 1")
        PL = [one, self.poll_check(vFLAG, f"s{sFPr}", 1)]
        for e in range(4):
            d = PTs[e >> 1] + 4 * (e & 1)
            if e == 2: PL.append(f"s_add_u32 s{sPr}, s{sPr}, 8192")
            PL.append(f"buffer_load_dwordx4 v[{d}:{d+3}], v{vPo}, s[{S_WS}:{S_WS+3}], s{sPr} offen" + (" offset:1024" if e & 1 else "") + " sc1")
        tail = ([self.stamp] if o["stamps"] else []) + red_write(3) + PL + [red_bar] + red_read(3) + red_fin(3) + out_store(2) + out_store(3)
        self.add_slot(None, tail)

    def finish(self):
        p, o = self.p, self.o
        if o["stamps"]:
            self.stamp()
            p.wait_tags(vm_all=True); self.stamp()
            p(f"v_readlane_b32 s{sTMP[0]}, v0, 63"); p(f"s_lshl_b32 s{sTMP[0]}, s{sTMP[0]}, 2"); p(f"s_add_u32 s{sTMP[0]}, s{sTMP[0]}, s{sW}")
            p(f"s_lshl_b32 s{sTMP[0]}, s{sTMP[0]}, 8"); p(f"s_add_u32 s{sTMP[0]}, s{sTMP[0]}, {WS_STAMP}")
            p(f"buffer_store_dword v0, v{self.vL4}, s[{S_WS}:{S_WS+3}], s{sTMP[0]} offen")
            if o.get("enc"):
                k, M = o["enc"]
                p(f"v_readlane_b32 s{sTMP[0]}, v0, 0"); p(f"v_readlane_b32 s{sTMP[1]}, v0, {k}")
                p(f"s_sub_u32 s{sTMP[1]}, s{sTMP[1]}, s{sTMP[0]}"); p(f"s_mul_i32 s{sTMP[1]}, s{sTMP[1]}, {M}"); p(f"s_add_u32 s{sTMP[1]}, s{sTMP[1]}, 5000")
                p(f"s_min_u32 s{sTMP[1]}, s{sTMP[1]}, 100000")
                if o.get("encg"):
                    p(f"s_not_b32 s{sTMP[2]}, s{sTMP[0]}"); p(f"v_mov_b32 v2, s{sTMP[2]}"); p("v_mov_b32 v3, 0"); p("s_mov_b64 exec, 1")
                    p(f"global_atomic_umax v3, v2, s[{sDBG}:{sDBG+1}] offset:60 sc1")
                    p.label("L_enc0")
                    p.raw(f"s_memrealtime s[{sSTAMP}:{sSTAMP+1}]"); p.raw("s_waitcnt lgkmcnt(0)")
                    p.raw(f"s_sub_u32 s{sSTAMP}, s{sSTAMP}, s{sTMP[0]}"); p.raw(f"s_cmp_lt_u32 s{sSTAMP}, 4000"); p.raw("s_cbranch_scc1 L_enc0")
                    p(f"global_load_dword v2, v3, s[{sDBG}:{sDBG+1}] offset:60 sc1")
                    p(f"v_readfirstlane_b32 s{sTMP[0]}, v2"); p(f"s_not_b32 s{sTMP[0]}, s{sTMP[0]}")
                p.label("L_enc")
                p.raw(f"s_memrealtime s[{sSTAMP}:{sSTAMP+1}]"); p.raw("s_waitcnt lgkmcnt(0)")
                p.raw(f"s_sub_u32 s{sSTAMP}, s{sSTAMP}, s{sTMP[0]}"); p.raw(f"s_cmp_lt_u32 s{sSTAMP}, s{sTMP[1]}"); p.raw("s_cbranch_scc1 L_enc")
            if o.get("dbgspan"):
                p(f"s_cmp_lg_u32 s{sW}, 0"); p("s_cbranch_scc1 L_nodbg")
                p(f"v_readlane_b32 s{sTMP[0]}, v0, 0"); p(f"s_not_b32 s{sTMP[0]}, s{sTMP[0]}"); p.raw(f"v_writelane_b32 v0, s{sTMP[0]}, 14")
                p("s_mov_b64 exec, 0x7fff")
                p(f"global_atomic_umax v{self.vL4}, v0, s[{sDBG}:{sDBG+1}] offset:4 sc1")
                p.label("L_nodbg")
        p("s_endpgm")

    def helper(self):
        p, o = self.p, self.o
        p.drained(); p.smem = set()
        K = lambda i: sKA + 2 * i
        p.label("L_helper")
        p(f"s_lshl_b32 s3, s3, 2"); p(f"s_add_u32 s3, s3, s{sTMP[0]}")
        p.wait_smem()
        self.srd(S_WS, K(16), WS_SIZE)
        p("s_cmp_lg_u32 s3, 0"); p("s_cbranch_scc1 L_noinit")
        for i in range(4): p(f"v_mov_b32 v{4+i}, 0")
        p("v_lshlrev_b32 v1, 4, v0")
        for i in range(3):
            p(f"s_mov_b32 s{sTMP[1]}, {WS_FL + 4096*i}")
            p(f"buffer_store_dwordx4 v[4:7], v1, s[{S_WS}:{S_WS+3}], s{sTMP[1]} offen sc1")
        p.raw("s_waitcnt vmcnt(0)"); p.drained()
        p("s_barrier")
        p("v_mov_b32 v5, 1")
        p("v_cmp_eq_u32 vcc, 0, v0"); p("s_and_saveexec_b64 s[50:51], vcc"); p("s_cbranch_execz L_nosig")
        p(f"global_store_dword v4, v5, s[{K(15)}:{K(15)+1}] sc1")
        p.label("L_nosig")
        p("s_mov_b64 exec, s[50:51]")
        p.label("L_noinit")
        if o["prefetch"]:
            p("s_getpc_b64 s[50:51]")
            p.label("L_pc")
            p(f"s_sub_u32 s50, s50, L_pc-{KN}_kernel"); p("s_subb_u32 s51, s51, 0")
            p("v_lshlrev_b32 v1, 7, v0"); p(f"v_min_u32 v2, L_pc-{KN}_kernel, v1")
            p("global_load_dword v8, v2, s[50:51]")
            self.srd(S_WG, K(10), 448 * 3584); self.srd(S_WU, K(11), 448 * 3584); self.srd(S_WD, K(12), 1792 * 896)
            self.srd(S_BRE, K(5), 448 * 896); self.srd(S_BIM, K(6), 448 * 896)
            p("v_cmp_gt_u32 vcc, 196, v0"); p("v_bfrev_b32 v3, 1")
            p("v_lshlrev_b32 v2, 8, v0"); p("v_cndmask_b32 v2, v3, v2, vcc")
            p("v_cndmask_b32 v1, v3, v1, vcc")
            p(f"s_mul_i32 s{sTMP[1]}, s3, {14*3584}")
            p(f"buffer_load_dword v9, v2, s[{S_WG}:{S_WG+3}], s{sTMP[1]} offen")
            p(f"buffer_load_dword v10, v2, s[{S_WU}:{S_WU+3}], s{sTMP[1]} offen")
            p(f"buffer_load_dword v11, v2, s[{S_WG}:{S_WG+3}], s{sTMP[1]} offen offset:128")
            p(f"buffer_load_dword v12, v2, s[{S_WU}:{S_WU+3}], s{sTMP[1]} offen offset:128")
            p(f"buffer_load_dword v13, v2, s[{S_WD}:{S_WD+3}], s{sTMP[1]} offen")
            p(f"buffer_load_dword v14, v2, s[{S_WD}:{S_WD+3}], s{sTMP[1]} offen offset:128")
            p(f"s_and_b32 s{sTMP[2]}, s3, 15"); p(f"s_mul_i32 s{sTMP[2]}, s{sTMP[2]}, {196*128}")
            p("s_cmp_lt_u32 s3, 16"); p("s_cbranch_scc1 L_cre")
            p(f"buffer_load_dword v15, v1, s[{S_BIM}:{S_BIM+3}], s{sTMP[2]} offen")
            p("s_branch L_cdone")
            p.label("L_cre")
            p(f"buffer_load_dword v16, v1, s[{S_BRE}:{S_BRE+3}], s{sTMP[2]} offen")
            p.label("L_cdone")
            p.raw("s_waitcnt vmcnt(0)")
        p.label("L_end")
        p("s_endpgm")

    def build(self):
        self.plan()
        self.prologue()
        self.phase1()
        self.phase2()
        self.run_slots()
        self.finish()
        self.helper()
        ins, added = pad_hazards(self.p.out)
        body = "\n".join(("" if i.kind == "label" else "    ") + i.text for i in ins)
        txt = HEADER + f"; @launch grid=(256,1,1) block=(256,1,1) lds={LDS_BYTES}\n"
        txt += '.amdgcn_target "amdgcn-amd-amdhsa--gfx950"\n.text\n'
        txt += f".globl {KN}_kernel\n.p2align 8\n.type {KN}_kernel,@function\n{KN}_kernel:\n" + body + "\n"
        txt += f""".section .rodata,"a"
.p2align 6
.amdhsa_kernel {KN}_kernel
  .amdhsa_next_free_vgpr 512
  .amdhsa_next_free_sgpr 102
  .amdhsa_accum_offset 256
  .amdhsa_group_segment_fixed_size 0
  .amdhsa_kernarg_size 136
  .amdhsa_user_sgpr_count 2
  .amdhsa_user_sgpr_kernarg_segment_ptr 1
  .amdhsa_system_sgpr_workgroup_id_x 1
  .amdhsa_float_denorm_mode_32 3
.end_amdhsa_kernel
"""
        self.stats = dict(n=len(ins), nops=added, waits=self.p.nwait)
        return txt

if __name__ == "__main__":
    out = sys.argv[1] if len(sys.argv) > 1 else "k.s"
    opts = json.loads(sys.argv[2]) if len(sys.argv) > 2 else {}
    g = Gen(**opts)
    open(out, "w").write(g.build())
    print(out, g.stats, {k: v // UNIT for k, v in g.pos.items()})
```
